```python
import torch

def _softmax(x, axis=-1):
    return torch.softmax(x, dim=axis)

def _gelu(x):
    return torch.nn.functional.gelu(x, approximate='tanh')

def _silu(x):
    return torch.nn.functional.silu(x)

def _sigmoid(x):
    return torch.sigmoid(x)

def _layernorm(x, axis=-1, eps=1e-05):
    m = x.mean(dim=axis, keepdim=True)
    v = x.var(dim=axis, keepdim=True, unbiased=False)
    return (x - m) / torch.sqrt(v + eps)

def _scatter_add(tgt, idx, src, axis=0):
    return tgt.clone().index_add_(axis, idx, src)

def _segment_sum(src, seg, n):
    out = torch.zeros((n,) + src.shape[1:], dtype=src.dtype)
    return out.index_add_(0, seg, src)

def _pad(x, pw):
    flat = tuple((v for pair in reversed(pw) for v in pair))
    return torch.nn.functional.pad(x, flat)
kernel_name = 'recurrent_scan__memory_aug_recurrent_mem_tr__geglu_ffn__prompt'

def setup_inputs():

    _w = lambda a: (lambda t: t.to(torch.bfloat16) if t.is_floating_point() else t)(torch.as_tensor(a))

    def _A_setup():
        B, S, Dm = (1, 2048, 576)
        H, Dh = (32, 128)
        M, seg = (8, 32)
        seg = min(seg, S)
        S = S // seg * seg
        return {'x': _w((lambda *s: torch.randn(*s, dtype=torch.bfloat16) * 0.05)(B, S, Dm)), 'mem0': _w((lambda *s: torch.randn(*s, dtype=torch.bfloat16) * 0.2)(B, M, Dm)), 'Wq': _w((lambda *s: torch.randn(*s, dtype=torch.bfloat16) * 0.8)(Dm, H, Dh) * Dm ** (-0.5)), 'Wk': _w((lambda *s: torch.randn(*s, dtype=torch.bfloat16) * 0.8)(Dm, H, Dh) * Dm ** (-0.5)), 'Wv': _w((lambda *s: torch.randn(*s, dtype=torch.bfloat16) * 0.2)(Dm, H, Dh) * Dm ** (-0.5)), 'Wo': _w((lambda *s: torch.randn(*s, dtype=torch.bfloat16) * 0.2)(H, Dh, Dm) * (H * Dh) ** (-0.5)), 'seg_len': seg}
    _A_in = _A_setup()

    def _B_setup():
        B, S, D, F = (1, 2048, 576, 4608)
        return {'x': _w((lambda *s: torch.randn(*s, dtype=torch.bfloat16) * 0.05)(B, S, D)), 'w_gate': _w((lambda *s: torch.randn(*s, dtype=torch.bfloat16) * 0.1)(D, F)), 'w_up': _w((lambda *s: torch.randn(*s, dtype=torch.bfloat16) * 0.1)(D, F)), 'w_down': _w((lambda *s: torch.randn(*s, dtype=torch.bfloat16) * 0.1)(F, D))}
    _B_in = _B_setup()
    return {'A_x': _A_in['x'], 'A_mem0': _A_in['mem0'], 'A_Wq': _A_in['Wq'], 'A_Wk': _A_in['Wk'], 'A_Wv': _A_in['Wv'], 'A_Wo': _A_in['Wo'], 'A_seg_len': _A_in['seg_len'], 'B_x': _B_in['x'], 'B_w_gate': _B_in['w_gate'], 'B_w_up': _B_in['w_up'], 'B_w_down': _B_in['w_down']}

def reference(A_x, A_mem0, A_Wq, A_Wk, A_Wv, A_Wo, A_seg_len, B_x, B_w_gate, B_w_up, B_w_down):

    def _A_ref(x, mem0, Wq, Wk, Wv, Wo, seg_len):
        B, S, Dm = x.shape
        H, Dh = (Wq.shape[1], Wq.shape[2])
        M = mem0.shape[1]
        scale = Dh ** (-0.5)
        n_seg = S // seg_len
        L = M + seg_len
        idx = torch.arange(L)
        mask = (idx[:, None] < M) | (idx[:, None] >= idx[None, :])
        mem = mem0
        outs = []
        for s in range(n_seg):
            xs = x[:, s * seg_len:(s + 1) * seg_len, :].clone()
            h = torch.concatenate([mem, xs], axis=1)
            q = torch.einsum('btd,dhe->bhte', h, Wq)
            k = torch.einsum('btd,dhe->bhte', h, Wk)
            v = torch.einsum('btd,dhe->bhte', h, Wv)
            scores = torch.einsum('bhqe,bhke->bhqk', q, k) * scale
            scores = torch.where(mask[None, None], scores, -1000000000.0)
            p = _softmax(scores, axis=-1)
            o = torch.einsum('bhqk,bhke->bhqe', p, v)
            o = torch.einsum('bhte,hed->btd', o, Wo)
            mem = o[:, :M, :].clone()
            outs.append(o[:, M:, :])
        return torch.concatenate(outs, axis=1)

    def _B_ref(x, w_gate, w_up, w_down):
        return _gelu(x @ w_gate) * (x @ w_up) @ w_down
    x = A_x
    xn = _layernorm(x, axis=-1)
    s = _A_ref(xn, A_mem0, A_Wq, A_Wk, A_Wv, A_Wo, A_seg_len)
    g = _silu(_B_ref(xn, B_w_gate, B_w_up, B_w_down))
    return x + s * g
```

```python
import re

REG_RE = re.compile(r'^(-|\|)?(abs\()?([vas])(\d+|\[(\d+):(\d+)\])\)?\|?$')


def regs_of(op):
    op = op.strip()
    if op in ('vcc', 'vcc_lo', 'vcc_hi'):
        return [('s', 'vcc')]
    if op in ('exec', 'exec_lo', 'exec_hi'):
        return [('s', 'exec')]
    if op == 'm0':
        return [('s', 'm0')]
    m = REG_RE.match(op)
    if not m:
        return []
    k = m.group(3)
    if m.group(5) is not None:
        return [(k, i) for i in range(int(m.group(5)), int(m.group(6)) + 1)]
    return [(k, int(m.group(4)))]


def split_ops(s):
    out, depth, cur = [], 0, ''
    for ch in s:
        if ch in '[(':
            depth += 1
        if ch in '])':
            depth -= 1
        if ch == ',' and depth == 0:
            out.append(cur.strip())
            cur = ''
        else:
            cur += ch
    if cur.strip():
        out.append(cur.strip())
    return out


TRANS = ('v_exp_f32', 'v_log_f32', 'v_rcp_f32', 'v_rsq_f32', 'v_sqrt_f32', 'v_sin_f32', 'v_cos_f32')


class Ins:
    __slots__ = ('text', 'op', 'defs', 'uses', 'kind', 'passes', 'srcc', 'srcab', 'label', 'target',
                 'ws', 'dpp', 'store_data', 'wide_store', 'vmem_sgprs')

    def __init__(self, text):
        self.text = text
        self.label = None
        self.target = None
        self.defs, self.uses = set(), set()
        self.srcc, self.srcab = set(), set()
        self.passes = 0
        self.ws = 1
        self.dpp = False
        self.store_data = set()
        self.wide_store = False
        self.vmem_sgprs = set()
        t = text.split(';')[0].strip()
        if t.endswith(':'):
            self.label = t[:-1]
            self.op, self.kind, self.ws = '', 'label', 0
            return
        if t == '' or t.startswith('.'):
            self.op, self.kind, self.ws = '', 'dir', 0
            return
        parts = t.split(None, 1)
        op = parts[0]
        for suf in ('_e32', '_e64'):
            if op.endswith(suf):
                op = op[:-4]
        self.op = op
        rest = parts[1] if len(parts) > 1 else ''
        ops = split_ops(rest)
        mods = []
        if ops:
            toks = ops[-1].split()
            ops[-1] = toks[0] if toks else ''
            mods = toks[1:]
        R = [regs_of(o) for o in ops]

        def U(i):
            if i < len(R):
                self.uses.update(R[i])

        def D(i):
            if i < len(R):
                self.defs.update(R[i])

        if op == 's_nop':
            self.kind = 'salu'
            self.ws = int(ops[0], 0) + 1
        elif op.startswith('v_mfma') or op.startswith('v_smfmac'):
            self.kind = 'mfma'
            if '32x32' in op:
                self.passes = 8
            else:
                self.passes = 4
            D(0)
            U(1); U(2); U(3)
            self.srcab.update(R[1]); self.srcab.update(R[2])
            if op.startswith('v_smfmac'):
                self.srcab.update(R[3])
                self.srcc.update(R[0]); self.uses.update(R[0])
            else:
                self.srcc.update(R[3])
        elif op.startswith('v_'):
            self.kind = 'trans' if op in TRANS else 'valu'
            if op.endswith('_dpp') or any(m.startswith('row_') or m.startswith('quad_perm') for m in mods):
                self.dpp = True
            if op.startswith('v_cmp'):
                D(0)
                for i in range(1, len(R)):
                    U(i)
                if op.startswith('v_cmpx'):
                    self.defs.add(('s', 'exec'))
            elif op.startswith('v_permlane') and 'swap' in op:
                self.kind = 'permlane'
                D(0); D(1); U(0); U(1)
            elif op in ('v_readfirstlane_b32', 'v_readlane_b32'):
                self.kind = 'readlane'
                D(0)
                for i in range(1, len(R)):
                    U(i)
            elif op in ('v_add_co_u32', 'v_sub_co_u32', 'v_addc_co_u32', 'v_subb_co_u32'):
                D(0); D(1)
                for i in range(2, len(R)):
                    U(i)
            else:
                D(0)
                for i in range(1, len(R)):
                    U(i)
                if op.startswith('v_fmac') or op.startswith('v_pk_fmac') or op.startswith('v_dot2c') or self.dpp \
                        or op == 'v_writelane_b32':
                    U(0)
                if op == 'v_cndmask_b32' and len(ops) == 3:
                    self.uses.add(('s', 'vcc'))
        elif op.startswith('buffer_') or op.startswith('global_'):
            self.kind = 'vmem'
            lds = 'lds' in mods
            if op in ('buffer_wbl2', 'buffer_inv'):
                pass
            elif op.startswith('buffer_load'):
                if lds:
                    for i in range(len(R)):
                        U(i)
                    self.uses.add(('s', 'm0'))
                    self.kind = 'vmem_lds'
                else:
                    D(0)
                    for i in range(1, len(R)):
                        U(i)
            elif op.startswith('buffer_store') or op.startswith('buffer_atomic'):
                for i in range(len(R)):
                    U(i)
                self.store_data.update(R[0])
                self.wide_store = 'x3' in op or 'x4' in op
                if op.startswith('buffer_atomic') and 'sc0' in mods:
                    D(0)
            elif op.startswith('global_load'):
                D(0)
                for i in range(1, len(R)):
                    U(i)
            else:
                for i in range(len(R)):
                    U(i)
                self.store_data.update(R[1])
                self.wide_store = 'x3' in op or 'x4' in op
            self.vmem_sgprs = {r for r in self.uses if r[0] == 's' and r[1] != 'm0'}
        elif op.startswith('ds_'):
            self.kind = 'ds'
            if op.startswith('ds_read') or op.startswith('ds_bpermute') or op.startswith('ds_swizzle'):
                D(0)
                for i in range(1, len(R)):
                    U(i)
            else:
                for i in range(len(R)):
                    U(i)
        elif op.startswith('s_'):
            self.kind = 'salu'
            if op.startswith('s_cbranch') or op == 's_branch':
                self.kind = 'branch'
                self.target = ops[0]
            elif op in ('s_waitcnt', 's_barrier', 's_endpgm', 's_sleep', 's_setprio'):
                pass
            elif op.startswith('s_cmp') or op.startswith('s_bitcmp'):
                for i in range(len(R)):
                    U(i)
            elif op.startswith('s_load') or op.startswith('s_buffer_load') or op in ('s_memtime', 's_memrealtime'):
                self.kind = 'smem'
                D(0)
                for i in range(1, len(R)):
                    U(i)
            else:
                D(0)
                for i in range(1, len(R)):
                    U(i)
                if 'saveexec' in op:
                    self.defs.add(('s', 'exec'))
        else:
            raise ValueError('unknown instruction: ' + text)


def _vec(rs):
    return {r for r in rs if r[0] in 'va'}


def _sc(rs):
    return {r for r in rs if r[0] == 's'}


VALUK = ('valu', 'trans', 'permlane', 'readlane')


def need(p, c):
    n = 0
    pk, ck = p.kind, c.kind
    if pk in VALUK:
        pv = _vec(p.defs)
        ps = _sc(p.defs)
        if ck == 'mfma' and pv & c.uses:
            n = max(n, 2)
        if ck == 'mfma' and ('s', 'exec') in ps:
            n = max(n, 4)
        if ck == 'permlane' and pv & c.uses:
            n = max(n, 2)
        if ck in VALUK and c.dpp and pv & c.uses:
            n = max(n, 2)
        if ck in VALUK and c.dpp and ('s', 'exec') in ps:
            n = max(n, 5)
        if ck == 'readlane' and pv & c.uses:
            n = max(n, 1)
        if ck == 'readlane' and ('s', 'exec') in ps:
            n = max(n, 4)
        if ck == 'permlane' and ('s', 'exec') in ps:
            n = max(n, 4)
        if pk == 'trans' and ck in VALUK + ('mfma',) and ck != 'trans' and pv & c.uses:
            n = max(n, 1)
        if pk == 'trans' and ck in ('vmem', 'ds', 'vmem_lds') and pv & c.uses:
            n = max(n, 1)
        if ps:
            if ck in VALUK and ps & c.uses:
                n = max(n, 4 if ck == 'readlane' else 2)
            if ck in ('vmem', 'vmem_lds') and ps & c.vmem_sgprs:
                n = max(n, 5)
            if ck in ('salu', 'smem', 'branch') and ps & c.uses:
                n = max(n, 1)
    if pk == 'mfma':
        P = p.passes
        big = {4: 8, 8: 12}[P]
        if ck == 'mfma':
            if p.defs & c.srcab:
                n = max(n, big)
            if p.defs & c.srcc:
                same = (p.defs == c.srcc) and c.passes == P
                n = max(n, 0 if same else {4: 6, 8: 10}[P])
            elif p.defs & c.defs:
                n = max(n, big)
        elif ck in VALUK + ('vmem', 'ds', 'vmem_lds'):
            if p.defs & (c.uses | c.defs):
                n = max(n, big)
            if ck in VALUK and p.srcc & c.defs:
                n = max(n, {4: 3, 8: 7}[P])
    if pk == 'vmem' and p.wide_store and p.store_data & c.defs:
        n = max(n, 2 if ck in VALUK else 1)
    if pk == 'salu' and ('s', 'm0') in p.defs and ck == 'vmem_lds':
        n = max(n, 1)
    if pk == 'salu' and ('s', 'exec') in p.defs and ck in VALUK and c.dpp:
        n = max(n, 1)
    return n


MAXW = 12


def insert_nops(lines, verbose=False):
    ins = [Ins(l) for l in lines]
    total = 0
    preds_by_label = {}
    for i, x in enumerate(ins):
        if x.kind == 'branch':
            preds_by_label.setdefault(x.target, []).append(i)
    extra = [0] * len(ins)
    for i, c in enumerate(ins):
        if c.kind in ('label', 'dir'):
            continue
        worst = 0
        stack = [(i - 1, 0, False, None)]
        seen = {}
        while stack:
            j, d, viab, dm = stack.pop()
            while j >= 0 and d < MAXW:
                p = ins[j]
                if p.op in ('s_branch', 's_endpgm', 's_setpc_b64') and not viab:
                    break
                viab = False
                if p.kind == 'mfma' and dm is not None:
                    d = max(d, dm + p.passes)
                    if d >= MAXW:
                        break
                key = (j, dm)
                if seen.get(key, 99) <= d:
                    break
                seen[key] = d
                if p.kind == 'label':
                    for b in preds_by_label.get(p.label, []):
                        stack.append((b, d, True, dm))
                    j -= 1
                    continue
                if p.kind == 'dir':
                    j -= 1
                    continue
                w = need(p, c)
                if w - d > worst:
                    worst = w - d
                if p.kind == 'mfma':
                    dm = d
                d += p.ws + extra[j]
                j -= 1
        if worst > 0:
            extra[i] = worst
            total += worst
            if verbose:
                print('nop %d before: %s' % (worst, c.text))
    out = []
    for i, x in enumerate(ins):
        if extra[i]:
            out.append('s_nop %d' % (extra[i] - 1))
        out.append(x.text)
    return out, total


class Asm:
    def __init__(self):
        self.lines = []
        self._uid = 0

    def __call__(self, s):
        for l in s.split('\n'):
            l = l.strip()
            if l:
                self.lines.append(l)

    def c(self, s):
        self.lines.append('; ' + s)

    def label(self, name):
        self.lines.append(name + ':')

    def uid(self, base):
        self._uid += 1
        return '%s_%d' % (base, self._uid)


def vr(k, n, cnt=1):
    if cnt == 1:
        return '%s%d' % (k, n)
    return '%s[%d:%d]' % (k, n, n + cnt - 1)


def finish(lines, verbose=False):
    body, total = insert_nops([l for l in lines if not l.startswith(';')], verbose)
    txt = []
    for l in body:
        if l.endswith(':') or l.startswith('.'):
            txt.append(l)
        else:
            txt.append('  ' + l)
    return '\n'.join(txt) + '\n', total
```

```python
from asmlib import *

KA_X, KA_MEM0, KA_WQ, KA_WK, KA_WV, KA_WO, KA_SEG, KA_BX, KA_WG, KA_WU, KA_WD, KA_OUT, KA_DBG, KA_WS = \
    [8 * i for i in range(14)]

NWG = 256
WBYTES = 576 * 4096 * 2
FBYTES = 576 * 4608 * 2
XBYTES = 2048 * 576 * 2

WS_SIZE = 0x10000000
WS_KV = 0x0400000
WS_KMVM = 0x8000000
WS_P = 0x3000000
P_SLOT = 0x80000
WS_MEM = 0x3100000
WS_FLAG = 0x3200000
WS_HIST = 0x3300000
WS_TS = 0x3400000
WS_Q = 0x4000000
WS_H = 0x5000000
WS_G = 0x7000000
WS_XP = 0x9000000

SCALE_LOG2E = (128 ** -0.5) * 1.4426950408889634


def f2u(x):
    import struct
    return struct.unpack('<I', struct.pack('<f', x))[0]


def srd(A, sbase, sptr, nbytes):
    A('s_mov_b32 s%d, s%d' % (sbase, sptr))
    A('s_and_b32 s%d, s%d, 0xffff' % (sbase + 1, sptr + 1))
    A('s_mov_b32 s%d, 0x%x' % (sbase + 2, nbytes))
    A('s_mov_b32 s%d, 0x20000' % (sbase + 3))


def kernel_text(name, body, vgprs=512, accum=256, sgprs=102):
    t = '.text\n.globl %s\n.p2align 8\n.type %s,@function\n%s:\n' % (name, name, name)
    t += body
    d = '.section .rodata,"a"\n.p2align 6\n.amdhsa_kernel %s\n' % name
    d += '  .amdhsa_next_free_vgpr %d\n  .amdhsa_next_free_sgpr %d\n  .amdhsa_accum_offset %d\n' % (vgprs, sgprs, accum)
    d += '  .amdhsa_group_segment_fixed_size 0\n  .amdhsa_kernarg_size 112\n  .amdhsa_user_sgpr_count 2\n'
    d += '  .amdhsa_user_sgpr_kernarg_segment_ptr 1\n  .amdhsa_system_sgpr_workgroup_id_x 1\n'
    d += '  .amdhsa_float_denorm_mode_32 3\n  .amdhsa_float_denorm_mode_16_64 3\n'
    d += '.end_amdhsa_kernel\n'
    return t, d


class Q:
    def __init__(self, A, name, maxn):
        self.A, self.name, self.maxn = A, name, maxn
        self.n = 0
        self.done = -1
        self.dma = []
        self.pos = []

    def issue(self, text):
        self.A(text)
        if text.rstrip().endswith(' lds'):
            self.dma.append(self.n)
        self.pos.append(len(self.A.lines))
        self.n += 1
        return self.n - 1

    def wait(self, i):
        if i is None or i <= self.done:
            return
        k = self.n - i - 1
        k = min(k, self.maxn)
        self.A('s_waitcnt %s(%d)' % (self.name, k))
        self.done = i

    def all(self):
        self.wait(self.n - 1)

    def age(self, i):
        return len(self.A.lines) - self.pos[i]
```

```python
from common import *

S_WS = 4
S_TA = 8
S_TB = 12
S_DBG = 16
S_W = 20
S_IDX = 21
S_XCC = 22
S_ROLE = 23
S_PTR = 24


def ptr(ka):
    return S_PTR + ka // 4


LDS_TOP = 163840


def emit_prologue(A):
    A('s_cmp_ge_u32 s2, %d' % NWG)
    A('s_cbranch_scc1 L_end')
    A('s_load_dwordx16 s[24:39], s[0:1], 0')
    A('s_load_dwordx8 s[40:47], s[0:1], 64')
    A('s_load_dwordx4 s[48:51], s[0:1], 96')
    A('s_getreg_b32 s%d, hwreg(HW_REG_XCC_ID)' % S_XCC)
    A('v_lshrrev_b32 v1, 6, v0')
    A('v_and_b32 v0, 63, v0')
    A('v_readfirstlane_b32 s%d, v1' % S_W)
    A('s_and_b32 s%d, s%d, 7' % (S_XCC, S_XCC))
    A('s_waitcnt lgkmcnt(0)')
    srd(A, S_WS, ptr(KA_WS), WS_SIZE)
    srd(A, S_DBG, ptr(KA_DBG), 256)
    A('v_mov_b32 v4, %d' % (LDS_TOP - 8))
    A('s_cmp_lg_u32 s%d, 0' % S_W)
    A('s_cbranch_scc1 L_role_wait')
    A('s_lshl_b32 s54, s2, 8')
    A('s_add_u32 s54, s54, 0x%x' % WS_FLAG)
    A('v_lshlrev_b32 v2, 2, v0')
    A('v_mov_b32 v1, 0')
    A('buffer_store_dword v1, v2, s[4:7], s54 offen sc1')
    A('s_waitcnt vmcnt(0)')
    A('s_lshl_b32 s54, s%d, 5' % S_XCC)
    A('v_mov_b32 v1, 1')
    A('v_mov_b32 v2, s54')
    A('s_mov_b64 exec, 1')
    A('buffer_atomic_add v1, v2, s[16:19], 0 offen sc0')
    A('s_mov_b64 exec, -1')
    A('v_lshlrev_b32 v2, 5, v0')
    A('s_mov_b32 s63, 0')
    A('s_waitcnt vmcnt(0)')
    A('v_readfirstlane_b32 s53, v1')
    A.label('L_role_poll')
    A('buffer_load_dword v3, v2, s[16:19], 0 offen sc1')
    A('s_add_u32 s63, s63, 1')
    A('s_waitcnt vmcnt(0)')
    for i in range(8):
        A('v_readlane_b32 s%d, v3, %d' % (54 + i, i))
    A('s_add_u32 s62, s54, s55')
    for i in range(2, 8):
        A('s_add_u32 s62, s62, s%d' % (54 + i))
    A('s_cmp_ge_u32 s63, 0x40000')
    A('s_cbranch_scc1 L_role_done')
    A('s_cmp_lt_u32 s62, %d' % NWG)
    A('s_cbranch_scc1 L_role_poll')
    A.label('L_role_done')
    A('s_mov_b32 s62, 8')
    for i in range(7, -1, -1):
        A('s_cmp_ge_u32 s%d, 32' % (54 + i))
        A('s_cselect_b32 s62, %d, s62' % i)
    A('s_mov_b32 s63, 0')
    for i in range(7):
        A('s_cmp_gt_u32 s%d, %d' % (S_XCC, i))
        A('s_cselect_b32 s64, s%d, 0' % (54 + i))
        A('s_add_u32 s63, s63, s64')
    A('s_add_u32 s63, s63, s53')
    A('s_cmp_ge_u32 s%d, s62' % S_XCC)
    A('s_cselect_b32 s64, 32, 0')
    A('s_sub_u32 s63, s63, s64')
    A('s_mov_b32 s64, 0')
    A('s_cmp_lg_u32 s%d, s62' % S_XCC)
    A('s_cbranch_scc1 L_role_pub')
    A('s_cmp_ge_u32 s53, 32')
    A('s_cbranch_scc1 L_role_pub')
    A('s_mov_b32 s64, 1')
    A('s_mov_b32 s63, s53')
    A.label('L_role_pub')
    A('v_mov_b32 v2, s64')
    A('v_mov_b32 v3, s63')
    A('ds_write_b64 v4, v[2:3]')
    A('s_waitcnt lgkmcnt(0)')
    A.label('L_role_wait')
    A('s_barrier')
    A('ds_read_b64 v[2:3], v4')
    A('s_waitcnt lgkmcnt(0)')
    A('v_readfirstlane_b32 s%d, v2' % S_ROLE)
    A('v_readfirstlane_b32 s%d, v3' % S_IDX)
    A('s_barrier')
```

```python
from prologue import *

L_MEM, L_SC, L_OB, L_DUM = 0, 9216, 9216, 14336
L_W = 16384
SCW = 1280
FLAG_KM = WS_FLAG + 0x1000
DBG_RECINIT = 4

import os
_RES = os.environ.get('RES', 'k4v2')
KRES, VRES, ORES = {
    'k4v3': ((4, 5, 6, 7), (0, 1, 8), [(0, 0), (1, 1)]),
    'k4v2': ((4, 5, 6, 7), (0, 1), [(0, 0), (1, 1), (2, 1)]),
    'k5v1': ((4, 5, 6, 7, 8), (0,), [(0, 0), (1, 1), (2, 1)]),
    'k6v0': ((3, 4, 5, 6, 7, 8), (), [(0, 0), (1, 1), (2, 1)]),
}[_RES]
CHUNKS = [('q', b) for b in range(9)] + [('k', b) for b in range(9) if b not in KRES] + \
         [('v', b) for b in range(9) if b not in VRES] + [('os', 0)] + \
         [('op', (p, kk)) for p in range(4) for kk in range(2) if (p, kk) not in ORES] + \
         [('k', b) for b in KRES] + [('v', b) for b in VRES] + [('op', x) for x in ORES]
assert len(CHUNKS) == 36
NREG = 27


def frag_reg(ci, f):
    n = ci * 2 + f
    if n < 32:
        return ('a', n * 8)
    return ('v', 80 + (n - 32) * 8)


CH_INDEX = {c: i for i, c in enumerate(CHUNKS)}


def wfrag(kind, idx, f):
    ci = CH_INDEX[(kind, idx)]
    if ci < NREG:
        k, b = frag_reg(ci, f)
        return ('reg', vr(k, b, 8))
    return ('lds', ci - NREG, f)


V_L16, V_IDX, V_SELQK, V_VMR = 0, 1, 2, 6
V_A, V_B, V_M, V_PP, V_PS, V_MP, V_VM, V_W0, V_W1, V_DUM = 10, 11, 12, 13, 14, 15, 16, 17, 18, 19

S_S, S_KV, S_KV2, S_MRD, S_MWR, S_E, S_PW, S_PR, S_EP, S_KM, S_FL, S_SPIN = range(52, 64)
S_T0, S_T1, S_T2, S_T3 = 64, 65, 66, 67
S_VMB, S_PR2, S_C, S_MC = 68, 69, 70, 71
S_PWP = 72
S_TCH, S_MB = 76, 77
S_MLO, S_MHI = 78, 80
S_C2 = 82
S_SELM = 8
S_TS = 24
MASK_LO8 = 0x00FF00FF
MASK_HI8 = 0xFF00FF00
SPIN_MAX = 0x20000
KM_STEP = 6144
KM_HEAD = 65 * 6144


def emit_sel(A, dst, u, base):
    for d in range(2):
        A('v_cmp_eq_u32 vcc, %d, v%d' % (base + 2 * d, u))
        A('v_mov_b32 v%d, 0' % (dst + d))
        A('v_cndmask_b32 v%d, v%d, v20, vcc' % (dst + d, dst + d))
        A('v_cmp_eq_u32 vcc, %d, v%d' % (base + 2 * d + 1, u))
        A('v_cndmask_b32 v%d, v%d, v21, vcc' % (dst + d, dst + d))


def emit_weight_load(A):
    h, w = S_IDX, S_W
    A('v_and_b32 v22, 15, v0')
    A('v_lshrrev_b32 v23, 4, v0')
    A('v_lshlrev_b32 v24, 4, v22')
    A('v_lshl_add_u32 v30, v23, 13, v24')
    A('v_mul_u32_u24 v31, 1152, v23')
    A('v_add_u32 v31, v31, v24')
    A('v_lshrrev_b32 v25, 3, v0')
    A('v_mul_u32_u24 v32, 1152, v25')
    A('v_and_b32 v25, 7, v0')
    A('v_lshl_add_u32 v32, v25, 4, v32')
    A('v_lshrrev_b32 v25, 2, v22')
    A('v_and_b32 v26, 3, v22')
    A('v_and_b32 v27, 1, v23')
    A('v_lshrrev_b32 v28, 1, v23')
    A('v_and_b32 v29, 1, v25')
    A('v_lshrrev_b32 v25, 1, v25')
    A('v_lshlrev_b32 v26, 3, v26')
    A('v_lshl_add_u32 v33, v28, 4, v27')
    A('v_lshl_add_u32 v33, v29, 1, v33')
    A('v_lshl_add_u32 v33, v25, 3, v33')
    A('v_lshl_add_u32 v33, v33, 8, v26')
    A('s_lshl_b32 s%d, s%d, 6' % (S_T0, w))
    A('v_add_u32 v33, s%d, v33' % S_T0)
    A('v_lshlrev_b32 v36, 4, v27')
    A('v_lshl_add_u32 v36, v28, 2, v36')
    A('v_add_u32 v36, v36, v29')
    A('v_lshl_add_u32 v34, v36, 8, v26')
    A('v_lshl_add_u32 v34, v25, 7, v34')
    A('s_lshl_b32 s%d, s%d, 5' % (S_T0, w))
    A('v_add_u32 v34, s%d, v34' % S_T0)
    A('v_lshl_add_u32 v35, v25, 5, v36')
    A('v_lshl_add_u32 v35, v35, 7, v26')
    A('v_add_u32 v35, s%d, v35' % S_T0)
    A('s_lshl_b32 s%d, s%d, 12' % (S_T0, w))
    A('v_lshlrev_b32 v39, 4, v0')
    A('v_add_u32 v39, s%d, v39' % S_T0)
    A('s_lshl_b32 s%d, s%d, 8' % (S_T1, h))
    A('s_lshl_b32 s%d, s%d, 17' % (S_T0, w))
    A('s_add_u32 s%d, s%d, s%d' % (S_T1, S_T1, S_T0))
    A('s_mul_i32 s%d, s%d, 147456' % (S_T2, h))
    A('s_mul_i32 s%d, s%d, %d' % (S_T0, w, 32 * 1152))
    A('s_add_u32 s%d, s%d, s%d' % (S_T3, S_T2, S_T0))
    A('s_mul_i32 s%d, s%d, %d' % (S_T0, w, 16 * 1152))
    A('s_add_u32 s%d, s%d, s%d' % (S_T2, S_T2, S_T0))
    A('s_lshl_b32 s76, s%d, 12' % w)
    srd(A, 8, ptr(KA_WQ), WBYTES)
    srd(A, 12, ptr(KA_WK), WBYTES)
    srd(A, 84, ptr(KA_WV), WBYTES)
    srd(A, 88, ptr(KA_WO), WBYTES)

    def dma(c):
        kind, idx = CHUNKS[c]
        slot = c % 9
        for i in range(4):
            A('s_add_u32 m0, s76, %d' % (L_W + slot * 16384 + i * 1024))
            if kind in 'qkv':
                A('s_add_u32 s77, s%d, %d' % (S_T1, (idx * 64 + i * 4) * 8192))
                sr = {'q': 8, 'k': 12, 'v': 84}[kind]
                A('buffer_load_dwordx4 v30, s[%d:%d], s77 offen lds' % (sr, sr + 3))
            elif kind == 'op':
                p, kk = idx
                A('s_add_u32 s77, s%d, %d' % (S_T2, (kk * 64 + i * 4) * 1152 + (2 * p + 1) * 128))
                A('buffer_load_dwordx4 v31, s[88:91], s77 offen lds')
            else:
                A('s_add_u32 s77, s%d, %d' % (S_T3, i * 8 * 1152))
                A('buffer_load_dwordx4 v32, s[88:91], s77 offen lds')

    def writeback(c):
        slot = c % 9
        A('v_add_u32 v37, %d, v39' % (L_W + slot * 16384))
        for q in range(4):
            A('ds_write_b128 v37, v[%d:%d] offset:%d' % (40 + 4 * q, 43 + 4 * q, q * 1024))

    for c in range(8):
        dma(c)
    for c in range(36):
        A('s_waitcnt vmcnt(%d) lgkmcnt(0)' % (4 * (min(35, c + 7) - c)))
        A('s_barrier')
        if c + 8 < 36:
            dma(c + 8)
        if c - 1 >= NREG:
            writeback(c - 1)
        kind, idx = CHUNKS[c]
        src = {'q': 33, 'k': 33, 'v': 33, 'op': 34, 'os': 35}[kind]
        A('v_add_u32 v38, %d, v%d' % (L_W + (c % 9) * 16384, src))
        for f in range(2):
            if c < NREG:
                k, b = frag_reg(c, f)
            else:
                k, b = 'v', 40 + 8 * f
            for hh in range(2):
                for dp in range(2):
                    if kind in 'qkv':
                        imm = (32 * hh + 4 * dp) * 256 + 32 * f
                    elif kind == 'op':
                        imm = (32 * f + 8 * hh + 2 * dp) * 256
                    else:
                        imm = (64 * f + 8 * hh + 2 * dp) * 128
                    A('ds_read_b64_tr_b16 %s, v38 offset:%d' % (vr(k, b + 4 * hh + 2 * dp, 2), imm))
    A('s_waitcnt lgkmcnt(0)')
    A('s_barrier')
    writeback(35)
    A('s_waitcnt lgkmcnt(0)')


def emit_consts(A):
    A('v_and_b32 v22, 15, v0')
    A('v_lshrrev_b32 v23, 4, v0')
    A('v_and_b32 v24, 7, v0')
    A('v_lshrrev_b32 v25, 3, v22')
    A('v_and_b32 v26, 1, v23')
    A('v_lshrrev_b32 v27, 1, v23')
    A('v_mov_b32 v20, 0x3f80')
    A('v_mov_b32 v21, 0x3f800000')
    A('v_mov_b32 v%d, 0x44444444' % V_IDX)
    A('v_mov_b32 v28, 0xeeeeeeee')
    A('v_cmp_eq_u32 vcc, 1, v25')
    A('v_cndmask_b32 v%d, v%d, v28, vcc' % (V_IDX, V_IDX))
    A('v_lshlrev_b32 v28, 2, v26')
    A('v_sub_u32 v28, v22, v28')
    emit_sel(A, V_SELQK, 28, 0)
    emit_sel(A, V_SELQK + 2, 28, 8)
    A('v_lshrrev_b32 v28, 1, v24')
    for d in range(4):
        A('v_cmp_eq_u32 s[%d:%d], %d, v28' % (S_SELM + 2 * d, S_SELM + 2 * d + 1, d))
    A('v_lshl_add_u32 v28, v23, 3, v24')
    A('v_lshlrev_b32 v%d, 4, v28' % V_A)
    A('v_lshl_add_u32 v%d, v25, 9, v%d' % (V_B, V_A))
    A('v_lshl_add_u32 v28, v26, 4, v22')
    A('v_lshlrev_b32 v%d, 3, v28' % V_M)
    A('v_lshlrev_b32 v28, 4, v28')
    A('v_lshl_add_u32 v%d, v27, 3, v28' % V_VM)
    A('v_lshlrev_b32 v28, 3, v22')
    A('v_lshl_add_u32 v28, v26, 7, v28')
    A('v_lshl_add_u32 v%d, v27, 2, v28' % V_PS)
    A('v_lshl_add_u32 v%d, v27, 15, v28' % V_PP)
    A('v_and_b32 v28, 3, v22')
    A('v_lshl_add_u32 v28, v27, 2, v28')
    A('v_lshlrev_b32 v28, 4, v28')
    A('v_lshl_add_u32 v28, v26, 7, v28')
    A('v_bfe_u32 v29, v22, 2, 1')
    A('v_lshl_add_u32 v%d, v29, 3, v28' % V_MP)
    A('v_mul_u32_u24 v40, 1152, v24')
    A('v_lshl_add_u32 v40, v23, 5, v40')
    A('v_lshl_add_u32 v40, v25, 4, v40')
    A('v_lshlrev_b32 v%d, 4, v0' % V_L16)
    A('v_add_u32 v%d, 0x10000, v%d' % (V_W0, V_L16))
    A('v_add_u32 v%d, 0x20000, v%d' % (V_W1, V_L16))
    A('s_mov_b32 s%d, 0x%x' % (S_C, f2u(SCALE_LOG2E)))
    A('s_mov_b32 s%d, s%d' % (S_C2, S_C))
    A('s_mov_b32 s%d, s%d' % (S_C2 + 1, S_C))
    for i in range(2):
        A('s_mov_b32 s%d, 0x%x' % (S_MLO + i, MASK_LO8))
        A('s_mov_b32 s%d, 0x%x' % (S_MHI + i, MASK_HI8))


def emit_ring_init(A):
    h, w = S_IDX, S_W
    for i in range(4):
        A('v_mov_b32 v%d, -1' % (40 + i))
    A('v_lshlrev_b32 v44, 4, v0')
    A('s_mul_i32 s%d, s%d, 9216' % (S_T0, h))
    A('s_lshl_b32 s%d, s%d, 11' % (S_T1, w))
    A('s_add_u32 s%d, s%d, s%d' % (S_T1, S_T0, S_T1))
    for slot in range(2):
        A('s_add_u32 s%d, s%d, 0x%x' % (S_T2, S_T1, WS_P + slot * P_SLOT))
        A('buffer_store_dwordx4 v[40:43], v44, s[4:7], s%d offen' % S_T2)
        A('buffer_store_dwordx4 v[40:43], v44, s[4:7], s%d offen offset:1024' % S_T2)
        A('s_add_u32 s%d, s%d, 0x%x' % (S_T2, S_T0, WS_P + slot * P_SLOT + 8192))
        A('buffer_store_dwordx4 v[40:43], v44, s[4:7], s%d offen' % S_T2)
    A('s_lshl_b32 s%d, s%d, 10' % (S_T1, h))
    A('s_add_u32 s%d, s%d, 0x%x' % (S_T2, S_T1, WS_MEM))
    A('buffer_store_dwordx4 v[40:43], v44, s[4:7], s%d offen' % S_T2)
    A('s_waitcnt vmcnt(0)')
    A('s_barrier')
    A('s_cmp_lg_u32 s%d, 0' % w)
    A('s_cbranch_scc1 L_ri_skip')
    A('v_mov_b32 v40, 1')
    A('v_mov_b32 v41, %d' % DBG_RECINIT)
    A('s_mov_b64 exec, 1')
    A('buffer_atomic_add v40, v41, s[16:19], 0 offen')
    A('s_mov_b64 exec, -1')
    A.label('L_ri_skip')


def emit_wait_counter(A, name, srdreg, voff_imm, soff, count, sspin=S_SPIN, st=S_T0):
    A('v_mov_b32 v45, %d' % voff_imm)
    A('s_mov_b32 s%d, 0' % sspin)
    A.label(name)
    A('buffer_load_dword v44, v45, s[%d:%d], %s offen sc1' % (srdreg, srdreg + 3, soff))
    A('s_add_u32 s%d, s%d, 1' % (sspin, sspin))
    A('s_waitcnt vmcnt(0)')
    A('v_readfirstlane_b32 s%d, v44' % st)
    A('s_cmp_ge_u32 s%d, 0x%x' % (sspin, SPIN_MAX * 8))
    A('s_cbranch_scc1 %s_x' % name)
    A('s_cmp_lt_u32 s%d, %d' % (st, count))
    A('s_cbranch_scc1 %s' % name)
    A.label(name + '_x')


def R(a, n):
    return 'v[%d:%d]' % (a, a + n - 1)


def smf_s(acc, a, b):
    return 'v_smfmac_f32_16x16x64_bf16 %s, %s, %s, v%d' % (R(acc, 4), R(a, 4), b, V_IDX)


def mf32(A, d, a, b, c=None):
    A('v_mfma_f32_16x16x32_bf16 %s, %s, %s, %s' % (R(d, 4), R(a, 4), R(b, 4), '0' if c is None else R(c, 4)))


def mf16(A, d, a, b, c):
    A('v_mfma_f32_16x16x16_bf16 %s, %s, %s, %s' % (R(d, 4), R(a, 2), R(b, 2), R(c, 4)))


def cvt(A, d, a, b):
    A('v_cvt_pk_bf16_f32 v%d, v%d, v%d' % (d, a, b))


def lds_frag_ops(dst, slot, f, w):
    off = L_W + slot * 16384 + w * 4096 + f * 2048
    base = (V_L16, V_W0, V_W1)[off >> 16]
    off &= 0xffff
    return ['ds_read_b128 %s, v%d offset:%d' % (R(dst + 4 * hh, 4), base, off + hh * 1024) for hh in range(2)]


NTS = [0]
VLEFT = [0] * 4
def delay(A, d):
    while d > 0:
        A('s_nop %d' % (min(d, 16) - 1))
        d -= 16


DPP8 = 'row_ror:8 row_mask:0xf bank_mask:0xf'
DPP8HI = 'row_ror:8 row_mask:0xf bank_mask:0xc'


def emit_step(A, w, dbg, cfg):
    h = S_IDX
    sfx = '_%d' % w
    nts = [0]

    def ts(tag='m'):
        if dbg and tag in cfg.get('tr', 'm'):
            A('s_memtime s[%d:%d]' % (S_TS + 2 * nts[0], S_TS + 2 * nts[0] + 1))
            nts[0] += 1

    L = Q(A, 'lgkmcnt', 15)
    V = Q(A, 'vmcnt', 63)
    own = [3, 7, 8] if w == 3 else [w, w + 4]
    rn = [b for b in range(9) if b not in own and b not in KRES]
    rr = [b for b in range(9) if b not in own and b in KRES]
    rn.sort(key=lambda b: b not in VRES)
    lastn = rn.pop()
    rest = []
    first = rn if len(rn) >= len(rr) else rr
    lists = [rn, rr] if first is rn else [rr, rn]
    while rn or rr:
        for l_ in lists:
            if l_:
                rest.append(l_.pop(0))
    order = own + rest + [lastn]
    AF = [20, 24, 28]
    Q0, K0, Q1, K1, V0, V1 = 32, 36, 40, 44, 48, 52
    SA, SB = 48, 72
    KX, VX, VMR = 56, 64, 76
    kl = [(b, f) for b in order if b in KRES for f in range(2)]
    XOR_OR2 = 0x7e
    OR_XOR = 0xf6
    dma_poll = cfg.get('dma_poll', 1)

    A('.p2align 5')
    A.label('L_step' + sfx)
    msoff = [S_MRD, S_MB, S_MC]

    def mem_loads():
        for i, b in enumerate(own):
            A('buffer_load_dwordx4 %s, v%d, s[4:7], s%d offen sc1' % (R(AF[i], 4), V_L16, msoff[i]))
    A.label('L_shadow' + sfx)
    stid, stbuf = {}, {}

    def k_rd(i, dst):
        b, f = kl[i]
        wf = wfrag('k', b, f)
        stbuf[i] = dst
        for o in lds_frag_ops(dst, wf[1], wf[2], w):
            stid[i] = L.issue(o)
    k_rd(0, SA)
    k_rd(1, SB)
    for r in range(32, 48, 2):
        A('v_mov_b64 %s, 0' % R(r, 2))
    for r in [S_PW, S_PR, S_PR2, S_PWP, S_PWP + 1, S_PWP + 2, S_PWP + 3]:
        A('s_xor_b32 s%d, s%d, 0x%x' % (r, r, P_SLOT))
    A('s_xor_b32 s%d, s%d, 0x4000' % (S_MWR, S_MWR))
    A('s_add_u32 s%d, s%d, 1' % (S_S, S_S))
    A('s_mov_b32 s%d, s%d' % (S_EP, S_E))
    A('s_bfe_u32 s%d, s%d, 0x10001' % (S_E, S_S))
    A('s_add_u32 s%d, s%d, %d' % (S_KV, S_KV, 0 if cfg.get('kv_fixed') else 16384))
    A('s_add_u32 s%d, s%d, 8192' % (S_KV2, S_KV))
    A('s_add_u32 s%d, s%d, %d' % (S_TCH, S_KV, 16384 + (w & 1) * 8192 - w * 2048))
    A('s_add_u32 s%d, s%d, %d' % (S_VMB, S_KM, 2048 + w * 1024))
    A('s_add_u32 s%d, s%d, %d' % (S_KM, S_KM, KM_STEP))
    A('s_add_u32 s%d, s%d, 128' % (S_FL, S_FL))
    if dbg:
        n = cfg.get('nts', 7)
        A('s_waitcnt lgkmcnt(0)')
        A('s_cmp_lt_u32 s%d, 6' % S_S)
        A('s_cbranch_scc1 L_noacc' + sfx)
        for i in range(n - 1):
            A('s_sub_u32 s%d, s%d, s%d' % (S_T0, S_TS + 2 * i + 2, S_TS + 2 * i))
            A('s_add_u32 s%d, s%d, s%d' % (84 + i, 84 + i, S_T0))
        A('s_sub_u32 s%d, s%d, s50' % (S_T0, S_TS))
        A('s_add_u32 s97, s97, s%d' % S_T0)
        A('s_add_u32 s98, s98, s101')
        A('s_add_u32 s99, s99, s100')
        A.label('L_noacc' + sfx)
        A('s_mov_b32 s50, s%d' % S_TS)
    no = len(own)
    delay(A, cfg.get('md', 0))
    A('s_cmp_ge_u32 s%d, 0x%x' % (S_SPIN, SPIN_MAX))
    A('s_cbranch_scc1 L_mchk' + sfx)
    mem_loads()
    A('s_branch L_mchk' + sfx)
    A.label('L_mretry' + sfx)
    mem_loads()
    for r in range(32, 48, 2):
        A('v_mov_b64 %s, 0' % R(r, 2))
    A.label('L_mchk' + sfx)
    A('s_add_u32 s%d, s%d, 1' % (S_SPIN, S_SPIN))
    A('s_cmp_ge_u32 s%d, 0x%x' % (S_SPIN, SPIN_MAX))
    A('s_cselect_b32 s%d, 0, 1' % S_T0)
    if dbg:
        A('s_mov_b32 s100, s%d' % S_SPIN)
    T = V_DUM

    seq = []
    for pos, b in enumerate(order):
        pat = [('q', 0), ('q', 1), ('k', 0), ('k', 1)] if pos < 8 else [('q', 0), ('k', 0), ('q', 1), ('k', 1)]
        for kind, f in pat:
            seq.append((pos, b, kind, f))
    acc = {('q', 0): Q0, ('q', 1): Q1, ('k', 0): K0, ('k', 1): K1}
    abuf = {pos: AF[pos] for pos in range(len(own))}
    aid = {}
    free_a = [AF[2]] if no == 2 else []
    next_a = len(own)
    next_k = 2
    free_st = []
    kuse = 0
    vid = {}
    post = [(0, 'x', 's_xor_b32 s%d, s%d, 0x4000' % (r, r)) for r in msoff[:no]]
    t0, dt = cfg.get('vm0', 5) + w, cfg.get('vmdt', 3)
    ts_ = cfg.get('slow0', 30)
    post += [
        (t0, 'kx', 'buffer_load_dwordx4 %s, v%d, s[4:7], s%d offen sc1' % (R(KX, 4), V_L16, S_KV)),
        (t0 + dt, 'kx', 'buffer_load_dwordx4 %s, v%d, s[4:7], s%d offen offset:1024 sc1' % (R(KX + 4, 4), V_L16, S_KV)),
        (t0 + 2 * dt, 'vx', 'buffer_load_dwordx4 %s, v%d, s[4:7], s%d offen sc1' % (R(VX, 4), V_L16, S_KV2)),
        (t0 + 3 * dt, 'vx', 'buffer_load_dwordx4 %s, v%d, s[4:7], s%d offen offset:1024 sc1' % (R(VX + 4, 4), V_L16, S_KV2)),
        (ts_ + w, 'vm', 'buffer_store_dwordx4 %s, v%d, s[4:7], s%d offen sc1' % (R(V_VMR, 4), V_L16, S_VMB))]
    if w >= 2:
        post += [(0, 'x', 's_mov_b32 m0, %d' % L_DUM), (0, 'v', 'v_lshlrev_b32 v%d, 3, v%d' % (V_DUM, V_L16)),
                 (t0 + 4 * dt, 'tc', 'buffer_load_dword v%d, s[4:7], s%d offen sc1 lds' % (V_DUM, S_TCH))]
    if w == 1:
        post += [(ts_ - 1, 'fl', 's_mov_b64 exec, 1\nbuffer_store_dword v%d, v%d, s[4:7], s%d offen sc1\ns_mov_b64 exec, -1' %
                  (V_IDX, V_L16, S_FL))]
    if cfg.get('no_km'):
        post = [p for p in post if p[1] not in ('vm', 'fl')]
    if cfg.get('no_touch'):
        post = [p for p in post if p[1] != 'tc']
    post.sort(key=lambda x: x[0])
    tail = ['v_mov_b64 %s, 0' % R(V0 + 2 * i, 2) for i in range(4)]
    bslot = cfg.get('bslot', 4)
    barrier_done = False
    head = {
        -1: ['s_waitcnt vmcnt(%d)' % (no - 1), ('l', 'ds_write_b128 v%d, %s offset:%d' % (V_L16, R(AF[0], 4), L_MEM + own[0] * 1024))],
        0: ['s_waitcnt vmcnt(%d)' % (no - 2), ('l', 'ds_write_b128 v%d, %s offset:%d' % (V_L16, R(AF[1], 4), L_MEM + own[1] * 1024)),
            'v_bitop3_b32 v%d, v20, v22, s%d bitop3:0x%x' % (T, S_EP, XOR_OR2)],
        1: ['v_bitop3_b32 v%d, v%d, v24, s%d bitop3:0x%x' % (T, T, S_EP, OR_XOR),
            'v_bitop3_b32 v%d, v%d, v26, s%d bitop3:0x%x' % (T, T, S_EP, OR_XOR)],
        2: ['v_and_b32 v%d, s%d, v%d' % (T, S_T0, T), 'v_cmp_ne_u32 vcc, 0, v%d' % T],
        3: ['s_cbranch_vccnz L_mretry' + sfx],
    }
    if no == 3:
        head[1] = ['s_waitcnt vmcnt(0)', ('l', 'ds_write_b128 v%d, %s offset:%d' % (V_L16, R(AF[2], 4), L_MEM + own[2] * 1024))] + head[1]
        head[2] = ['v_bitop3_b32 v%d, v%d, v28, s%d bitop3:0x%x' % (T, T, S_EP, OR_XOR),
                   'v_bitop3_b32 v%d, v%d, v30, s%d bitop3:0x%x' % (T, T, S_EP, OR_XOR)] + head[2]

    def emit_head(k):
        for o in head.get(k, []):
            if isinstance(o, tuple):
                L.issue(o[1])
            else:
                A(o)
    emit_head(-1)
    ts()
    ts('q')

    def needs(n):
        pos, b, kind, f = seq[n]
        ids = [aid.get(pos)]
        if wfrag(kind, b, f)[0] != 'reg':
            ids.append(stid[kuse])
        ids = [i for i in ids if i is not None and i > L.done]
        return max(ids) if ids else None
    for n, (pos, b, kind, f) in enumerate(seq):
        L.wait(needs(n))
        wf = wfrag(kind, b, f)
        if wf[0] == 'reg':
            A(smf_s(acc[(kind, f)], abuf[pos], wf[1]))
        else:
            A(smf_s(acc[(kind, f)], abuf[pos], R(stbuf[kuse], 8)))
            free_st.append(stbuf[kuse])
            kuse += 1
        if n + 1 == len(seq) or seq[n + 1][0] != pos:
            if pos < 6:
                free_a.append(abuf[pos])
        if n % 4 == 3:
            ts('q')
        emit_head(n)
        if n == bslot:
            L.all()
            A('s_barrier')
            barrier_done = True
            ts()
            ts('q')
        if not barrier_done:
            continue
        budget = cfg.get('qbud', 2)
        valu = None
        while budget > 0:
            if post and post[0][0] <= n and post[0][1] not in 'xv' and budget == cfg.get('qbud', 2):
                _, tag, o = post.pop(0)
                vid[tag] = V.issue(o)
                budget -= 1 if '\n' not in o else 3
            elif free_a and next_a < 9:
                abuf[next_a] = free_a.pop(0)
                aid[next_a] = L.issue('ds_read_b128 %s, v%d offset:%d' %
                                      (R(abuf[next_a], 4), V_L16, L_MEM + order[next_a] * 1024))
                next_a += 1
                budget -= 1
            elif free_st and next_k < len(kl) and budget >= 2:
                k_rd(next_k, free_st.pop(0))
                next_k += 1
                budget -= 2
            elif post and post[0][0] <= n and post[0][1] in 'xv':
                _, tag, o = post.pop(0)
                if tag == 'v':
                    valu = o
                    break
                if tag == 'x':
                    A(o)
                else:
                    vid[tag] = V.issue(o)
                    budget = min(budget, 2)
                budget -= 1 if '\n' not in o else 3
            else:
                break
        if valu is None and SA in free_st and next_k == len(kl) and tail:
            valu = tail.pop(0)
        if valu:
            if n + 1 < len(seq):
                L.wait(needs(n + 1))
            A(valu)
    for o in tail:
        A(o)
    assert not post
    ts()
    ts('s')

    last3 = [6, 7, 8]
    vorder = [p for p in last3 if order[p] not in VRES] + [p for p in last3 if order[p] in VRES]
    vn = [p for p in range(6) if order[p] not in VRES]
    vr_ = [p for p in range(6) if order[p] in VRES]
    seqv = []
    while vn or vr_:
        if vr_: seqv.append(vr_.pop(0))
        if vn: seqv.append(vn.pop(0))
        if vn: seqv.append(vn.pop(0))
    vorder += seqv
    vq = [(pos, f) for pos in vorder for f in range(2)]
    vlds = [(pos, f) for pos, f in vq if order[pos] in VRES]
    vst = {'next_rd': 3, 'next_w': 0, 'free': [SB]}
    vwid, vwbuf = {}, {}

    def v_prefetch():
        while vst['free'] and vst['next_w'] < len(vlds):
            pos, f = vlds[vst['next_w']]
            wf = wfrag('v', order[pos], f)
            dst = vst['free'].pop(0)
            vwbuf[(pos, f)] = dst
            for o in lds_frag_ops(dst, wf[1], wf[2], w):
                vwid[(pos, f)] = L.issue(o)
            vst['next_w'] += 1

    def F(k=1, minage=16, force=False):
        for _ in range(k):
            pick = None
            for j, (pos, f) in enumerate(vq):
                if pos not in abuf_v:
                    continue
                res = order[pos] in VRES
                if res and (pos, f) not in vwid:
                    continue
                ids = [i for i in (aid.get(('v', pos)), vwid.get((pos, f))) if i is not None and i > L.done]
                if not force and ids and L.age(max(ids)) < minage:
                    continue
                pick = j
                break
            if pick is None:
                return
            pos, f = vq.pop(pick)
            L.wait(aid.get(('v', pos)))
            wf = wfrag('v', order[pos], f)
            if wf[0] == 'reg':
                A(smf_s((V0, V1)[f], abuf_v[pos], wf[1]))
            else:
                L.wait(vwid[(pos, f)])
                A(smf_s((V0, V1)[f], abuf_v[pos], R(vwbuf[(pos, f)], 8)))
                vst['free'].append(vwbuf[(pos, f)])
                v_prefetch()
            if (pos, 1 - f) not in vq and vst['next_rd'] < 9:
                np_ = vorder[vst['next_rd']]
                abuf_v[np_] = abuf_v[pos]
                aid[('v', np_)] = L.issue('ds_read_b128 %s, v%d offset:%d' %
                                          (R(abuf_v[np_], 4), V_L16, L_MEM + order[np_] * 1024))
                vst['next_rd'] += 1
    abuf_v = {p: abuf[p] for p in last3}

    v_prefetch()
    F(1)
    for i in range(4):
        cvt(A, Q0 + i, Q0 + 2 * i, Q0 + 2 * i + 1)
    cvt(A, Q1, Q1, Q1 + 1); cvt(A, Q1 + 1, Q1 + 2, Q1 + 3)
    mf32(A, K0, Q0, V_SELQK)
    cvt(A, Q1 + 2, K1, K1 + 1); cvt(A, Q1 + 3, K1 + 2, K1 + 3)
    V.wait(vid['kx'])
    mf32(A, K1, Q1, V_SELQK)
    F(1)
    X = 32
    cvt(A, X, K0, K0 + 1); cvt(A, X + 1, K0 + 2, K0 + 3)
    F(1)
    cvt(A, X + 2, K1, K1 + 1); cvt(A, X + 3, K1 + 2, K1 + 3)
    ts('f')
    ts('s')
    mf32(A, 44, X, X)
    mf32(A, 36, KX, X)
    A('s_mov_b64 exec, s[%d:%d]' % (S_MHI, S_MHI + 1))
    if not cfg.get('no_km'):
        V.issue('buffer_store_dwordx4 %s, v%d, s[4:7], s%d offen offset:%d sc1' % (R(X, 4), V_A, S_KM, w * 512))
    A('s_mov_b64 exec, -1')
    mf32(A, 40, KX + 4, X)
    A('v_mov_b32_dpp v44, v46 ' + DPP8HI)
    A('v_mov_b32_dpp v45, v47 ' + DPP8HI)
    F(1)
    A('s_mov_b32 exec_lo, 0')
    L.issue('ds_write_b64 v%d, v[44:45] offset:%d' % (V_M, L_SC + w * SCW + 1024))
    A('s_mov_b32 exec_lo, -1')
    for j in range(4):
        A('v_mov_b32_dpp v%d, v%d %s' % (36 + j, 40 + j, DPP8HI))
    wid = L.issue('ds_write_b128 v%d, v[36:39] offset:%d' % (V_L16, L_SC + w * SCW))
    ts('s')
    F(cfg.get('f_w1', 5), 10)
    ts('s')
    L.wait(wid)
    ts('s')
    A('s_barrier')
    ts('s')
    ts()
    XR = [36, 40, 44, 32]
    MR = [56, 58, 60, 62]
    rid = []
    for i in range(4):
        L.issue('ds_read_b128 %s, v%d offset:%d' % (R(XR[i], 4), V_L16, L_SC + SCW * i))
        rid.append(L.issue('ds_read_b64 %s, v%d offset:%d' % (R(MR[i], 2), V_M, L_SC + SCW * i + 1024)))
        if i in cfg.get('f_r1', (1, 3)):
            F(1, 8)

    def add(d, a, b):
        A('v_add_f32 v%d, v%d, v%d' % (d, a, b))

    def pk(op, d, a, b):
        A('v_pk_%s_f32 %s, %s, %s' % (op, R(d, 2), R(a, 2), R(b, 2)))
    F(cfg.get('f_r2', 1), 8)
    ts('s')
    L.wait(rid[1])
    ts('s')
    for j in range(4):
        add(36 + j, 36 + j, 40 + j)
    add(56, 56, 58); add(57, 57, 59)
    L.wait(rid[3])
    ts('s')
    A('s_barrier')
    ts('s')
    pk('add', 44, 44, 32); pk('add', 46, 46, 34); pk('add', 60, 60, 62)
    pk('add', 36, 36, 44); pk('add', 38, 38, 46); pk('add', 40, 56, 60)
    A('v_max3_f32 v42, v36, v37, v38')
    A('v_max3_f32 v43, v39, v40, v41')
    A('v_max_f32 v42, v42, v43')
    ts('s')
    F()
    A('v_max_f32_dpp v42, v42, v42 ' + DPP8)
    A('v_mov_b32 v43, v42')
    F()
    A('v_permlane16_swap_b32 v42, v43')
    A('v_max_f32 v42, v42, v43')
    A('v_mov_b32 v43, v42')
    F()
    A('v_permlane32_swap_b32 v42, v43')
    A('v_max_f32 v42, v42, v43')
    A('v_mul_f32 v42, s%d, v42' % S_C)
    ts('f')
    ts('s')
    VLEFT[w] = len(vq)
    for j in range(6):
        A('v_fma_f32 v%d, v%d, s%d, -v42' % (36 + j, 36 + j, S_C))
        if j % 2 == 1:
            F(1, 0, True)
        A('v_exp_f32 v%d, v%d' % (36 + j, 36 + j))
    F(20, 0, True)
    assert not vq
    PX, PM = 44, 32
    V.wait(vid['vx'])
    cvt(A, PX, 36, 37); cvt(A, PX + 1, 38, 39); cvt(A, PM, 40, 41)
    A('s_cmp_eq_u32 s%d, 63' % S_S)
    A('v_mov_b32_dpp v%d, v%d %s' % (PX + 2, PX, DPP8))
    A('v_mov_b32_dpp v%d, v%d %s' % (PX + 3, PX + 1, DPP8))
    cvt(A, V_VMR, V0, V0 + 1); cvt(A, V_VMR + 1, V0 + 2, V0 + 3)
    O0, O1 = 20, 24
    WB = [56, 72]
    wol = [(p, kk, f) for (p, kk) in ORES for f in range(2)]
    wid_ = {}

    def wo_rd(i, dst):
        p, kk, f = wol[i]
        wf = wfrag('op', (p, kk), f)
        for o in lds_frag_ops(dst, wf[1], wf[2], w):
            wid_[i] = L.issue(o)
    ts('f')
    ts('p')
    mf32(A, O0, VX, PX)
    A('v_mov_b32_dpp v%d, v%d %s' % (PM + 1, PM, DPP8))
    A('v_add_f32 v40, v40, v41')
    mf32(A, O1, VX + 4, PX)
    cvt(A, V_VMR + 2, V1, V1 + 1); cvt(A, V_VMR + 3, V1 + 2, V1 + 3)
    A('s_cbranch_scc1 L_rec_fin')
    mf16(A, O0, V_VMR, PM, O0)
    A('v_add_f32 v36, v36, v37')
    A('v_add_f32 v38, v38, v39')
    mf16(A, O1, V_VMR + 2, PM, O1)
    ts('p')
    A('v_fmac_f32 v36, 0.5, v40')
    A('v_add_f32 v36, v36, v38')
    wo_rd(0, WB[0])
    A('v_add_f32_dpp v36, v36, v36 ' + DPP8)
    A('v_mov_b32 v37, v36')
    wo_rd(1, WB[1])
    A('v_permlane16_swap_b32 v36, v37')
    A('v_add_f32 v36, v36, v37')
    A('v_mov_b32 v37, v36')
    A('s_nop 1')
    A('v_permlane32_swap_b32 v36, v37')
    A('v_add_f32 v36, v36, v37')
    A('v_rcp_f32 v36, v36')
    ts('p')
    A('s_mov_b64 exec, s[%d:%d]' % (S_MLO, S_MLO + 1))
    for j in range(0, 8, 2):
        A('v_pk_mul_f32 %s, %s, v[36:37] op_sel_hi:[1,0]' % (R(O0 + j, 2), R(O0 + j, 2)))
    for j in range(4):
        cvt(A, O0 + j, O0 + 2 * j, O0 + 2 * j + 1)
    wid = L.issue('ds_write_b128 v%d, %s offset:%d' % (V_A, R(O0, 4), L_OB + w * 512))
    A('s_mov_b64 exec, -1')
    ts('p')
    CS, C0, C1, C2, C3 = 52, 64, 68, 28, 32
    for r in (CS, C0, C1, C2, C3):
        A('v_mov_b64 %s, 0' % R(r, 2))
        A('v_mov_b64 %s, 0' % R(r + 2, 2))
    ts('p')
    L.wait(wid)
    ts('p')
    if cfg.get('sync'):
        A.label('L_sync' + sfx)
        A('s_memrealtime s[48:49]')
        A('s_waitcnt lgkmcnt(0)')
        A('s_and_b32 s48, s48, 511')
        A('s_cmp_ge_u32 s48, 5')
        A('s_cbranch_scc1 L_sync' + sfx)
    A('s_barrier')
    ts()
    ts('p')
    ts('o')
    AK = [20, 24]
    AD = [36, 40, 44, 48]
    ak = [L.issue('ds_read_b128 %s, v%d offset:%d' % (R(AK[kb], 4), V_B, L_OB + 1024 * kb)) for kb in range(2)]
    ad = [L.issue('ds_read_b128 %s, v%d offset:%d' % (R(AD[kq], 4), V_A, L_OB + 512 * kq)) for kq in range(4)]
    L.wait(ak[0])
    A(smf_s(CS, AK[0], wfrag('os', 0, 0)[1]))
    L.wait(ak[1])
    A(smf_s(CS, AK[1], wfrag('os', 0, 1)[1]))
    CP = [C0, C1, C2, C3]

    def tag(r):
        return 'v_bfi_b32 v%d, 1, s%d, v%d' % (r, S_E, r)

    def cv(d, a, b):
        return 'v_cvt_pk_bf16_f32 v%d, v%d, v%d' % (d, a, b)
    stf = cfg.get('stf', '')
    fin_single = ['v_permlane32_swap_b32 v%d, v%d' % (CS, CS + 2), 'v_permlane32_swap_b32 v%d, v%d' % (CS + 1, CS + 3),
                  'v_add_f32 v%d, v%d, v%d' % (CS, CS, CS + 2), 'v_add_f32 v%d, v%d, v%d' % (CS + 1, CS + 1, CS + 3),
                  cv(CS, CS, CS + 1), tag(CS),
                  ('vm', 'buffer_store_dword v%d, v%d, s[4:7], s%d offen%s' % (CS, V_PS, S_PW, stf))]

    def fin_pair(p):
        q = CP[p]
        return [cv(q, q, q + 1), cv(q + 1, q + 2, q + 3), tag(q),
                ('vm', 'buffer_store_dwordx2 %s, v%d, s[4:7], s%d offen%s' % (R(q, 2), V_PP, S_PWP + p, stf))]
    pend = []
    oseq = [(p, kq) for p in range(4) for kq in range(4)]
    li = {(p, 2 * kk + f): i for i, (p, kk, f) in enumerate(wol)}
    assert sorted(li.values(), key=lambda i: oseq.index((wol[i][0], 2 * wol[i][1] + wol[i][2]))) == list(range(len(wol)))
    wbuf = {0: WB[0], 1: WB[1]}
    nxt = [2]

    def wo_next(buf):
        if nxt[0] < len(wol):
            wbuf[nxt[0]] = buf
            wo_rd(nxt[0], buf)
            nxt[0] += 1
    wo_next(20)

    def oneed(n):
        p, kq = oseq[n]
        ids = [ad[kq]]
        if (p, kq) in li:
            ids.append(wid_[li[(p, kq)]])
        return max(ids)
    L.wait(oneed(0))
    for n, (p, kq) in enumerate(oseq):
        wf = wfrag('op', (p, kq // 2), kq % 2)
        if wf[0] == 'reg':
            A(smf_s(CP[p], AD[kq], wf[1]))
        else:
            A(smf_s(CP[p], AD[kq], R(wbuf[li[(p, kq)]], 8)))
            wo_next(wbuf[li[(p, kq)]])
        if n % 2 == 1:
            ts('o')
        if kq == 1:
            pend += fin_single if p == 0 else fin_pair(p - 1)
        if pend and isinstance(pend[0], tuple):
            V.issue(pend.pop(0)[1])
        if n + 1 < len(oseq):
            L.wait(oneed(n + 1))
        k = 2 if n in (2, 3, 4) else 1
        while k and pend and not isinstance(pend[0], tuple):
            A(pend.pop(0))
            k -= 1
    A('s_mov_b32 s%d, 0' % S_SPIN)
    for o in pend + fin_pair(3):
        if isinstance(o, tuple):
            V.issue(o[1])
        else:
            A(o)
    ts()
    ts('o')
    if cfg.get('ackm'):
        for k in (4, 3, 2, 1, 0):
            A('s_waitcnt vmcnt(%d)' % k)
            ts()
    if w < 2:
        if w == 1:
            A('s_cmp_ge_u32 s%d, 4' % h)
            A('s_cbranch_scc1 L_nored' + sfx)
        SELR, D, TT = 60, 52, 56
        pre = ['v_bfe_u32 v56, v%d, 4, 1' % V_L16, 'v_lshlrev_b32 v56, 4, v56', 'v_mov_b32 v57, 0x3f80',
               'v_lshlrev_b32 v56, v56, v57']
        pre += ['v_cndmask_b32 v%d, 0, v56, s[%d:%d]' % (SELR + d, S_SELM + 2 * d, S_SELM + 2 * d + 1) for d in range(4)]

        def p_loads():
            for i in range(8):
                A('buffer_load_dwordx4 %s, v%d, s[4:7], s%d offen offset:%d sc1' %
                  (R(20 + 4 * i, 4), V_L16, S_PR if i < 4 else S_PR2, (i % 4) * 1024))
        for o in pre:
            A(o)
        A('s_waitcnt vmcnt(%d)' % cfg.get('ptrig', 2))
        delay(A, cfg.get('pd', 0))
        A.label('L_ppoll' + sfx)
        p_loads()
        A('s_add_u32 s%d, s%d, 1' % (S_SPIN, S_SPIN))
        A('s_cmp_ge_u32 s%d, 0x%x' % (S_SPIN, SPIN_MAX))
        for i in range(8):
            r = 20 + 4 * i
            A('s_waitcnt vmcnt(%d)' % (7 - i))
            mf32(A, D, r, SELR, None if i == 0 else D)
            if i == 0:
                A('v_bitop3_b32 v%d, v%d, v%d, s%d bitop3:0x%x' % (TT, r, r + 2, S_E, XOR_OR2))
            else:
                A('v_bitop3_b32 v%d, v%d, v%d, s%d bitop3:0x%x' % (TT, TT, r, S_E, OR_XOR))
                A('v_bitop3_b32 v%d, v%d, v%d, s%d bitop3:0x%x' % (TT, TT, r + 2, S_E, OR_XOR))
        A('v_and_b32 v%d, 1, v%d' % (TT, TT))
        A('v_cmp_ne_u32 vcc, 0, v%d' % TT)
        A('s_cbranch_scc1 L_pok' + sfx)
        A('s_cbranch_vccnz L_ppoll' + sfx)
        A.label('L_pok' + sfx)
        A('s_mov_b64 exec, s[%d:%d]' % (S_MLO, S_MLO + 1))
        cvt(A, 58, D, D + 1)
        cvt(A, 59, D + 2, D + 3)
        A(tag(58))
        A('buffer_store_dwordx2 v[58:59], v%d, s[4:7], s%d offen' % (V_MP, S_MWR))
        if cfg.get('hist'):
            A('s_add_u32 s%d, s%d, 1' % (S_T0, S_S))
            A('s_mul_i32 s%d, s%d, 9216' % (S_T0, S_T0))
            A('s_and_b32 s%d, s%d, 0x3fff' % (S_T1, S_MWR))
            A('s_add_u32 s%d, s%d, s%d' % (S_T0, S_T0, S_T1))
            A('s_add_u32 s%d, s%d, 0x%x' % (S_T0, S_T0, WS_HIST))
            A('buffer_store_dwordx2 v[58:59], v%d, s[4:7], s%d offen' % (V_MP, S_T0))
        A('s_mov_b64 exec, -1')
        if dbg:
            A('s_mov_b32 s101, s%d' % S_SPIN)
        A('s_mov_b32 s%d, 0' % S_SPIN)
        A.label('L_nored' + sfx)
    ts()
    A('s_barrier')
    A('s_branch L_step' + sfx)
    NTS[0] = nts[0]


def emit_rec(A, dbg=False, kv_wait=None, cfg={}):
    h, w = S_IDX, S_W
    emit_ring_init(A)
    emit_weight_load(A)
    emit_consts(A)
    A('s_add_u32 s%d, s%d, 4' % (S_T0, h))
    A('s_cmp_eq_u32 s%d, 1' % w)
    A('s_cselect_b32 s%d, s%d, s%d' % (S_T0, h, S_T0))
    A('s_lshl_b32 s%d, s%d, 8' % (S_MWR, S_T0))
    A('s_add_u32 s%d, s%d, 0x%x' % (S_MWR, S_MWR, WS_MEM + 0x4000))
    A('s_lshl_b32 s%d, s%d, 13' % (S_PR, S_T0))
    A('s_add_u32 s%d, s%d, 0x%x' % (S_PR, S_PR, WS_P + P_SLOT))
    A('s_add_u32 s%d, s%d, 4096' % (S_PR2, S_PR))
    A('s_lshl_b32 s%d, s%d, 8' % (S_PW, h))
    A('s_lshl_b32 s%d, s%d, 13' % (S_T1, w))
    A('s_add_u32 s%d, s%d, s%d' % (S_PW, S_PW, S_T1))
    A('s_add_u32 s%d, s%d, 0x%x' % (S_PW, S_PW, WS_P + P_SLOT))
    for i in range(4):
        A('s_add_u32 s%d, s%d, %d' % (S_PWP + i, S_PW, 32768 * (2 * i + 1)))
    A('s_lshl_b32 s%d, s%d, 10' % (S_MRD, w))
    A('s_add_u32 s%d, s%d, 0x%x' % (S_MRD, S_MRD, WS_MEM + 0x4000))
    A('s_add_u32 s%d, s%d, 4096' % (S_MB, S_MRD))
    A('s_mov_b32 s%d, 0x%x' % (S_MC, WS_MEM + 0x4000 + 8192))
    A('s_mov_b32 s%d, -1' % S_S)
    A('s_mov_b32 s%d, 0' % S_E)
    A('s_lshl_b32 s%d, s%d, 20' % (S_KV, h))
    A('s_lshl_b32 s%d, s%d, 11' % (S_T0, w))
    A('s_add_u32 s%d, s%d, s%d' % (S_KV, S_KV, S_T0))
    A('s_add_u32 s%d, s%d, 0x%x' % (S_KV, S_KV, WS_KV - 16384))
    A('s_mul_i32 s%d, s%d, %d' % (S_KM, h, KM_HEAD))
    A('s_add_u32 s%d, s%d, 0x%x' % (S_KM, S_KM, WS_KMVM))
    A('s_lshl_b32 s%d, s%d, 2' % (S_FL, h))
    A('s_add_u32 s%d, s%d, 0x%x' % (S_FL, S_FL, FLAG_KM - 384))
    srd(A, 84, ptr(KA_MEM0), 9216)
    A('s_lshl_b32 s%d, s%d, 7' % (S_T0, w))
    A('buffer_load_dwordx4 v[20:23], v40, s[84:87], s%d offen' % S_T0)
    A('buffer_load_dwordx4 v[24:27], v40, s[84:87], s%d offen offset:512' % S_T0)
    A('buffer_load_dwordx4 v[28:31], v40, s[84:87], 0 offen offset:1024')
    A('s_mov_b32 s%d, 0x05040100' % S_T1)
    A('s_mov_b32 s%d, 0x07060302' % S_T2)
    A('s_waitcnt vmcnt(0)')
    for r in (20, 24, 28):
        A('v_perm_b32 v44, v%d, v%d, s%d' % (r + 1, r, S_T1))
        A('v_perm_b32 v45, v%d, v%d, s%d' % (r + 3, r + 2, S_T1))
        A('v_perm_b32 v46, v%d, v%d, s%d' % (r + 1, r, S_T2))
        A('v_perm_b32 v%d, v%d, v%d, s%d' % (r + 3, r + 3, r + 2, S_T2))
        A('v_mov_b32 v%d, v44' % r)
        A('v_mov_b32 v%d, v45' % (r + 1))
        A('v_mov_b32 v%d, v46' % (r + 2))
    emit_wait_counter(A, 'L_wrecinit', S_DBG, DBG_RECINIT, '0', 32)
    if kv_wait:
        kv_wait(A)
    A('s_mov_b32 s%d, 0x%x' % (S_SPIN, SPIN_MAX))
    if dbg:
        A('s_memrealtime s[50:51]')
        for i in range(84, 102):
            A('s_mov_b32 s%d, 0' % i)
        A('s_waitcnt lgkmcnt(0)')
        A('s_mov_b32 s51, s50')
    A('s_barrier')
    for i in range(4):
        A('s_cmp_eq_u32 s%d, %d' % (w, i))
        A('s_cbranch_scc1 L_shadow_%d' % i)
    A('s_branch L_end')
    for i in range(4):
        emit_step(A, i, dbg, cfg)
    A.label('L_rec_fin')
    if dbg:
        A('s_memrealtime s[100:101]')
        A('s_lshl_b32 s%d, s%d, 2' % (S_T0, h))
        A('s_add_u32 s%d, s%d, s%d' % (S_T0, S_T0, w))
        A('s_lshl_b32 s%d, s%d, 7' % (S_T0, S_T0))
        A('s_add_u32 s%d, s%d, 0x%x' % (S_T0, S_T0, WS_TS))
        A('s_waitcnt lgkmcnt(0)')
        A('v_mov_b32 v70, 0')
        for i in range(16):
            A('v_writelane_b32 v70, s%d, %d' % (84 + i, i))
        A('v_writelane_b32 v70, s100, 16')
        A('v_writelane_b32 v70, s51, 17')
        A('v_writelane_b32 v70, s3, 18')
        A('v_lshrrev_b32 v71, 2, v%d' % V_L16)
        A('s_mov_b32 exec_hi, 0')
        A('buffer_store_dword v70, v71, s[4:7], s%d offen' % S_T0)
        A('s_mov_b64 exec, -1')
    A('s_lshl_b32 s%d, s%d, 10' % (S_T0, w))
    A('s_add_u32 s%d, s%d, s%d' % (S_T0, S_T0, S_KM))
    A('buffer_store_dwordx4 %s, v%d, s[4:7], s%d offen offset:2048 sc1' % (R(V_VMR, 4), V_L16, S_T0))
    A('s_waitcnt vmcnt(0)')
    A('s_barrier')
    A('s_cmp_lg_u32 s%d, 0' % w)
    A('s_cbranch_scc1 L_end')
    A('s_mov_b64 exec, 1')
    A('buffer_store_dword v%d, v%d, s[4:7], s%d offen offset:128 sc1' % (V_IDX, V_L16, S_FL))
    A('buffer_store_dword v%d, v%d, s[4:7], s%d offen offset:256 sc1' % (V_IDX, V_L16, S_FL))
    A('s_mov_b64 exec, -1')
    A('s_branch L_end')


def kv_wait(A):
    import wrk
    A('v_lshrrev_b32 v45, 5, v%d' % V_L16)
    A('v_lshlrev_b32 v45, 10, v45')
    A('v_bfe_u32 v44, v%d, 4, 1' % V_L16)
    A('v_lshl_add_u32 v45, v44, 7, v45')
    A('s_lshl_b32 s%d, s%d, 2' % (S_T0, S_IDX))
    A('s_add_u32 s%d, s%d, 0x%x' % (S_T0, S_T0, wrk.FL_U))
    wrk.poll_flags(A, 'L_kvw', 45, 's%d' % S_T0, 32, spin=S_SPIN, vt=44)


def build_rec_test(dbg=True, cfg={}):
    A = Asm()
    if dbg:
        A('s_memrealtime s[100:101]')
        A('s_waitcnt lgkmcnt(0)')
        A('s_mov_b32 s3, s100')
    emit_prologue(A)
    A('s_cmp_eq_u32 s%d, 0' % S_ROLE)
    A('s_cbranch_scc1 L_end')
    emit_rec(A, dbg, None, cfg)
    A.label('L_end')
    A('s_endpgm')
    body, n = finish(A.lines)
    t, d = kernel_text('rec_kernel', body)
    hdr = '; @launch kernel=rec_kernel grid=(256,1,1) block=(256,1,1) lds=163840\n'
    hdr += '.amdgcn_target "amdgcn-amd-amdhsa--gfx950"\n'
    return hdr + t + d, n


if __name__ == '__main__':
    import sys
    import json
    cfg = json.loads(sys.argv[3]) if len(sys.argv) > 3 else {}
    txt, n = build_rec_test(dbg=(len(sys.argv) < 3 or sys.argv[2] != 'nodbg'), cfg=cfg)
    cfg['nts'] = NTS[0]
    txt, n = build_rec_test(dbg=(len(sys.argv) < 3 or sys.argv[2] != 'nodbg'), cfg=cfg)
    open(sys.argv[1], 'w').write(txt)
    print('nops', n, 'lines', txt.count('\n'), 'vleft', VLEFT)
```

```python
from prologue import *

FL_KM = WS_FLAG + 0x1000
FL_U = WS_FLAG + 0x4000
FL_G = WS_FLAG + 0x8000
FL_X = WS_FLAG + 0x9000
SPIN_MAX = 0x40000
OOB = 0x40000000

S_RB, S_CG, S_U = 52, 53, 54
S_T0, S_T1, S_T2, S_T3, S_SPIN = 55, 56, 57, 58, 59
SRD_A, SRD_B = 8, 12
S_OFA, S_OFB, S_RS8, S_LDW = 60, 61, 62, 63
S_KIND, S_OUT, S_FLG, S_PFLG = 64, 65, 66, 67
S_NKIND, S_NOUT, S_NFLG = 68, 69, 70
S_RS64 = 71
S_K0, S_K1, S_K2 = 72, 73, 74

V_LANE, V_DMA, V_ST, V_L16 = 0, 1, 2, 3
V_TR = 4
V_DQ, V_DG = 10, 11
V_WF = 16
V_ACC = 48
V_TMP = 112


def R(a, n, k='v'):
    return vr(k, a, n)


def poll_flags(A, name, voff, soff, nlanes, spin=S_SPIN, vt=V_TMP, srdr=S_WS):
    A('s_mov_b32 s%d, 0' % spin)
    mask = (1 << nlanes) - 1
    A('s_mov_b32 exec_lo, 0x%x' % (mask & 0xffffffff))
    A('s_mov_b32 exec_hi, 0x%x' % (mask >> 32))
    A.label(name)
    A('buffer_load_dword v%d, v%d, s[%d:%d], %s offen sc1' % (vt, voff, srdr, srdr + 3, soff))
    A('s_add_u32 s%d, s%d, 1' % (spin, spin))
    A('s_cmp_ge_u32 s%d, 0x%x' % (spin, SPIN_MAX))
    A('s_waitcnt vmcnt(0)')
    A('v_cmp_eq_u32 vcc, 0, v%d' % vt)
    A('s_cbranch_scc1 %s_x' % name)
    A('s_cbranch_vccz %s_x' % name)
    A('s_sleep 2')
    A('s_branch %s' % name)
    A.label(name + '_x')
    A('s_mov_b64 exec, -1')


def emit_wconsts(A):
    l = V_LANE
    A('v_lshlrev_b32 v%d, 4, v%d' % (V_L16, l))
    A('v_bfe_u32 v20, v%d, 4, 1' % l)
    A('v_lshlrev_b32 v20, 2, v20')
    A('v_and_b32 v21, 7, v%d' % l)
    A('v_xor_b32 v20, v20, v21')
    A('v_lshlrev_b32 v20, 4, v20')
    A('v_lshrrev_b32 v21, 3, v%d' % l)
    A('v_lshl_add_u32 v%d, v21, 13, v20' % V_DQ)
    A('v_mul_u32_u24 v22, 9216, v21')
    A('v_add_u32 v%d, v22, v20' % V_DG)
    A('v_mul_u32_u24 v22, 1152, v21')
    A('v_add_u32 v12, v22, v20')
    A('v_bfe_u32 v20, v%d, 2, 2' % l)
    A('v_lshrrev_b32 v21, 5, v%d' % l)
    A('v_lshl_add_u32 v22, v21, 3, v20')
    A('v_lshlrev_b32 v22, 7, v22')
    A('v_bfe_u32 v23, v%d, 4, 1' % l)
    A('v_lshl_add_u32 v22, v23, 5, v22')
    A('v_and_b32 v23, 3, v%d' % l)
    A('v_lshl_add_u32 v22, v23, 3, v22')
    A('v_bfe_u32 v23, v%d, 3, 1' % l)
    A('v_lshl_add_u32 v%d, v23, 6, v22' % V_TR)
    A('v_xor_b32 v%d, 64, v%d' % (V_TR + 1, V_TR))
    for wdw in (1, 2):
        for b in range(2):
            A('v_add_u32 v%d, 0x%x, v%d' % (V_TR + 2 * wdw + b, 65536 * wdw, V_TR + b))
    A('v_lshlrev_b32 v23, 9, v21')
    A('v_sub_u32 v13, v%d, v23' % V_TR)
    A('v_xor_b32 v14, 64, v13')
    A('v_bfe_u32 v20, v%d, 4, 1' % l)
    A('v_lshlrev_b32 v20, 10, v20')
    A('v_lshl_add_u32 v20, v21, 8, v20')
    A('v_and_b32 v22, 15, v%d' % l)
    A('v_lshl_add_u32 v%d, v22, 4, v20' % V_ST)
    A('s_lshl_b32 s%d, s%d, 11' % (S_LDW, S_W))
    A('s_and_b32 s%d, s%d, 15' % (S_RB, S_IDX))
    A('s_lshr_b32 s%d, s%d, 4' % (S_CG, S_IDX))


def emit_ln(A):
    l = V_LANE
    srd(A, SRD_A, ptr(KA_X), XBYTES)
    A('v_lshrrev_b32 v20, 4, v%d' % l)
    A('v_and_b32 v21, 7, v%d' % l)
    A('v_xor_b32 v20, v20, v21')
    A('v_lshrrev_b32 v21, 3, v%d' % l)
    A('v_mul_u32_u24 v21, 1152, v21')
    A('v_lshl_add_u32 v22, v20, 4, v21')
    A('v_xor_b32 v20, 4, v20')
    A('v_lshl_add_u32 v23, v20, 4, v21')
    A('s_lshl_b32 s%d, s%d, 2' % (S_T0, S_RB))
    A('s_add_u32 s%d, s%d, s%d' % (S_T0, S_T0, S_W))
    A('s_mul_i32 s%d, s%d, 36864' % (S_T0, S_T0))
    A('s_mul_i32 s%d, s%d, 36864' % (S_T1, S_W))
    for rg in range(4):
        for cgp in range(9):
            A('s_add_u32 m0, s%d, %d' % (S_T1, (rg * 9 + cgp) * 1024))
            A('s_add_u32 s%d, s%d, %d' % (S_T2, S_T0, rg * 9216 + cgp * 128))
            A('buffer_load_dwordx4 v%d, s[8:11], s%d offen lds' % (22 + (rg & 1), S_T2))
    A('v_bfe_u32 v20, v%d, 3, 2' % l)
    A('v_mul_u32_u24 v24, 9216, v20')
    A('v_and_b32 v21, 7, v%d' % l)
    A('v_lshl_add_u32 v24, v21, 7, v24')
    A('v_add_u32 v24, s%d, v24' % S_T1)
    A('v_lshrrev_b32 v21, 1, v21')
    A('v_and_b32 v20, 1, v20')
    A('v_lshl_add_u32 v20, v20, 2, v21')
    A('v_lshrrev_b32 v21, 5, v%d' % l)
    A('v_xor_b32 v20, v20, v21')
    for sm in range(4):
        A('v_xor_b32 v21, %d, v20' % (2 * sm))
        A('v_lshl_add_u32 v%d, v21, 4, v24' % (26 + sm))
    A('s_waitcnt vmcnt(0)')
    XR = 112
    for s in range(36):
        A('ds_read_b128 %s, v%d offset:%d' % (R(XR + 4 * s, 4), 26 + (s & 3), (s >> 2) * 1024))
    A('v_mov_b32 v30, 0x3f803f80')
    for i in range(8):
        A('v_mov_b32 v%d, 0' % (32 + i))
    A('s_waitcnt lgkmcnt(0)')
    A('s_barrier')


def emit_ln_compute(A):
    XR = 112
    for i in range(144):
        A('v_dot2_f32_bf16 v%d, v%d, v30, v%d' % (32 + (i & 3), XR + i, 32 + (i & 3)))
        A('v_dot2_f32_bf16 v%d, v%d, v%d, v%d' % (36 + (i & 3), XR + i, XR + i, 36 + (i & 3)))
    A('s_nop 2')
    for b in (32, 36):
        A('v_add_f32 v%d, v%d, v%d' % (b, b, b + 1))
        A('v_add_f32 v%d, v%d, v%d' % (b + 2, b + 2, b + 3))
        A('v_add_f32 v%d, v%d, v%d' % (b, b, b + 2))
        A('v_mov_b32 v%d, v%d' % (b + 1, b))
        A('v_permlane32_swap_b32 v%d, v%d' % (b, b + 1))
        A('v_add_f32 v%d, v%d, v%d' % (b, b, b + 1))
    A('v_mul_f32 v32, 0x%x, v32' % f2u(1.0 / 576))
    A('v_mul_f32 v36, 0x%x, v36' % f2u(1.0 / 576))
    A('v_fma_f32 v36, -v32, v32, v36')
    A('v_max_f32 v36, 0, v36')
    A('v_add_f32 v36, 0x%x, v36' % f2u(1e-5))
    A('v_rsq_f32 v36, v36')
    A('s_mov_b32 s%d, 0xffff0000' % S_T0)
    A('v_mul_f32 v32, v32, v36')
    for i in range(144):
        t = 40 + 2 * (i & 3)
        A('v_lshlrev_b32 v%d, 16, v%d' % (t, XR + i))
        A('v_and_b32 v%d, s%d, v%d' % (t + 1, S_T0, XR + i))
        A('v_pk_fma_f32 %s, %s, v[36:37], v[32:33] op_sel_hi:[1,0,0] neg_lo:[0,0,1] neg_hi:[0,0,1]' % (R(t, 2), R(t, 2)))
        A('v_cvt_pk_bf16_f32 v%d, v%d, v%d' % (t, t, t + 1))
        A('v_accvgpr_write_b32 a%d, v%d' % (i, t))


def emit_unit_params(A, tag, cfg={}):
    p = S_T0
    A('s_mul_i32 s%d, s%d, 14' % (p, S_U))
    A('s_add_u32 s%d, s%d, s%d' % (p, p, S_CG))
    A('s_lshl_b32 s%d, s%d, 2' % (S_T3, S_RB))
    A('s_add_u32 s%d, s%d, s%d' % (S_T3, S_T3, S_W))
    A('s_lshl_b32 s%d, s%d, 10' % (S_NFLG, S_RB))
    A('s_add_u32 s%d, s%d, 0x%x' % (S_NFLG, S_NFLG, FL_U))
    A('s_cmp_ge_u32 s%d, 168' % p)
    A('s_cbranch_scc1 L_up_none' + tag)
    A('s_cmp_ge_u32 s%d, 136' % p)
    A('s_cbranch_scc1 L_up_q' + tag)
    A('s_cmp_ge_u32 s%d, 64' % p)
    A('s_cbranch_scc1 L_up_g' + tag)
    A('s_and_b32 s%d, s%d, 1' % (S_NKIND, p))
    A('s_lshr_b32 s%d, s%d, 1' % (S_T1, p))
    A('s_cmp_eq_u32 s%d, 0' % S_NKIND)
    A('s_cselect_b32 s8, s%d, s%d' % (ptr(KA_WK), ptr(KA_WV)))
    A('s_cselect_b32 s9, s%d, s%d' % (ptr(KA_WK) + 1, ptr(KA_WV) + 1))
    A('s_lshl_b32 s%d, s%d, 20' % (S_NOUT, S_T1))
    A('s_lshl_b32 s%d, s%d, 14' % (S_T2, S_T3))
    A('s_add_u32 s%d, s%d, s%d' % (S_NOUT, S_NOUT, S_T2))
    A('s_lshl_b32 s%d, s%d, 13' % (S_T2, S_NKIND))
    A('s_add_u32 s%d, s%d, s%d' % (S_NOUT, S_NOUT, S_T2))
    A('s_add_u32 s%d, s%d, 0x%x' % (S_NOUT, S_NOUT, WS_KV))
    A('s_lshl_b32 s%d, s%d, 5' % (S_T2, S_NKIND))
    A('s_add_u32 s%d, s%d, s%d' % (S_T2, S_T2, S_T1))
    A('s_branch L_up_qkv' + tag)
    A.label('L_up_q' + tag)
    A('s_sub_u32 s%d, s%d, 136' % (S_T1, p))
    A('s_mov_b32 s%d, 0' % S_NKIND)
    A('s_mov_b32 s8, s%d' % ptr(KA_WQ))
    A('s_mov_b32 s9, s%d' % (ptr(KA_WQ) + 1))
    A('s_lshl_b32 s%d, s%d, 19' % (S_NOUT, S_T1))
    A('s_lshl_b32 s%d, s%d, 13' % (S_T2, S_T3))
    A('s_add_u32 s%d, s%d, s%d' % (S_NOUT, S_NOUT, S_T2))
    A('s_add_u32 s%d, s%d, 0x%x' % (S_NOUT, S_NOUT, WS_Q))
    A('s_add_u32 s%d, s%d, 64' % (S_T2, S_T1))
    A.label('L_up_qkv' + tag)
    A('s_and_b32 s9, s9, 0xffff')
    A('s_mov_b32 s10, 0x%x' % WBYTES)
    A('s_mov_b32 s12, s8')
    A('s_mov_b32 s13, s9')
    A('s_mov_b32 s14, s10')
    A('s_lshl_b32 s%d, s%d, 8' % (S_OFA, S_T1))
    A('s_lshl_b32 s%d, s%d, 17' % (S_T1, S_W))
    A('s_add_u32 s%d, s%d, s%d' % (S_OFA, S_OFA, S_T1))
    A('s_add_u32 s%d, s%d, 128' % (S_OFB, S_OFA))
    A('s_mov_b32 s%d, 65536' % S_RS8)
    A('v_mov_b32 v%d, v%d' % (V_DMA, V_DQ))
    A('s_branch L_up_fin' + tag)
    A.label('L_up_g' + tag)
    A('s_sub_u32 s%d, s%d, 64' % (S_T1, p))
    A('s_mov_b32 s%d, 2' % S_NKIND)
    A('s_mov_b32 s8, s%d' % ptr(KA_WG))
    A('s_and_b32 s9, s%d, 0xffff' % (ptr(KA_WG) + 1))
    A('s_mov_b32 s10, 0x%x' % FBYTES)
    A('s_mov_b32 s12, s%d' % ptr(KA_WU))
    A('s_and_b32 s13, s%d, 0xffff' % (ptr(KA_WU) + 1))
    A('s_mov_b32 s14, s10')
    A('s_mul_i32 s%d, s%d, %d' % (S_NOUT, S_T3, 144 * 2048))
    A('s_lshl_b32 s%d, s%d, 12' % (S_T2, S_T1))
    A('s_add_u32 s%d, s%d, s%d' % (S_NOUT, S_NOUT, S_T2))
    A('s_add_u32 s%d, s%d, 0x%x' % (S_NOUT, S_NOUT, WS_H))
    A('s_lshl_b32 s%d, s%d, 7' % (S_OFA, S_T1))
    A('s_mul_i32 s%d, s%d, %d' % (S_T2, S_W, 16 * 9216))
    A('s_add_u32 s%d, s%d, s%d' % (S_OFA, S_OFA, S_T2))
    A('s_mov_b32 s%d, s%d' % (S_OFB, S_OFA))
    A('s_mov_b32 s%d, %d' % (S_RS8, 8 * 9216))
    A('v_mov_b32 v%d, v%d' % (V_DMA, V_DG))
    A('s_add_u32 s%d, s%d, 96' % (S_T2, S_T1))
    A('s_branch L_up_fin' + tag)
    A.label('L_up_none' + tag)
    A('s_mov_b32 s%d, 3' % S_NKIND)
    A('s_mov_b32 s%d, 0x%x' % (S_OFA, OOB))
    A('s_mov_b32 s%d, 0x%x' % (S_OFB, OOB))
    A('s_mov_b32 s%d, 0' % S_RS8)
    A('s_mov_b32 s%d, 255' % S_T2)
    A.label('L_up_fin' + tag)
    A('s_lshl_b32 s%d, s%d, 2' % (S_T2, S_T2))
    A('s_add_u32 s%d, s%d, s%d' % (S_NFLG, S_NFLG, S_T2))
    A('s_lshl_b32 s%d, s%d, 3' % (S_RS64, S_RS8))
    if cfg.get('dmafix') == 1:
        A('s_mov_b32 s%d, 0' % S_RS64)
    if cfg.get('dmafix') == 2:
        A('s_and_b32 s%d, s%d, 0xfffe0000' % (S_OFA, S_OFA))
        A('s_add_u32 s%d, s%d, 128' % (S_OFB, S_OFA))
    A('s_add_u32 s%d, s%d, 1' % (S_U, S_U))


def dma_ops(slot):
    ops = []
    for half in range(2):
        sr = SRD_A if half == 0 else SRD_B
        so = S_OFA if half == 0 else S_OFB
        for i in range(2):
            g = ['s_add_u32 m0, s%d, %d' % (S_LDW, slot * 16384 + half * 8192 + i * 1024)]
            if i == 0:
                g.append('s_nop 0')
                g.append('buffer_load_dwordx4 v%d, s[%d:%d], s%d offen lds' % (V_DMA, sr, sr + 3, so))
            else:
                g.append('s_add_u32 s%d, s%d, s%d' % (S_T3, so, S_RS8))
                g.append('buffer_load_dwordx4 v%d, s[%d:%d], s%d offen lds' % (V_DMA, sr, sr + 3, S_T3))
                g.append('s_add_u32 s%d, s%d, s%d' % (so, so, S_RS64))
            ops.append(g)
    return ops


def tr_ops(dst, kk, nt):
    j, ks = kk // 4, kk % 4
    out = []
    for t in range(2):
        off = j * 16384 + (nt >> 1) * 8192 + (16 * ks + 4 * t) * 128
        out.append('ds_read_b64_tr_b16 %s, v%d offset:%d' % (R(dst + 2 * t, 2), V_TR + 2 * (off >> 16) + (nt & 1), off & 0xffff))
    return out


def emit_first_frags(A):
    for nt in range(4):
        for o in tr_ops(V_WF + 4 * nt, 0, nt):
            A(o)


def emit_unit(A, orient, tag, cfg={}):
    JF = cfg.get('jf', 2)
    for kk in range(36):
        j, ks = kk // 4, kk % 4
        st = kk & 1
        nk = (kk + 1) % 36
        fill = []
        if ks == 1:
            dm = dma_ops((j + 8) % 9)
        for nt in range(4):
            A('s_waitcnt lgkmcnt(6)')
            wf = R(V_WF + 16 * st + 4 * nt, 4)
            xf = R(4 * kk, 4, 'a')
            a, b = (wf, xf) if orient == 'T' else (xf, wf)
            acc = R(V_ACC + 16 * nt, 16)
            A('v_mfma_f32_32x32x16_bf16 %s, %s, %s, %s' % (acc, a, b, '0' if kk == 0 else acc))
            if ks == 1 and nt == 0:
                A('s_waitcnt vmcnt(%d)' % (min(24, 4 * j) if j == JF else 24))
                A('s_barrier')
                if j == 1:
                    emit_unit_params(A, tag, cfg)
                if j == JF:
                    A('s_cmp_lg_u32 s%d, 0' % S_W)
                    A('s_cbranch_scc1 L_nofl' + tag)
                    A('s_mov_b64 exec, 1')
                    A('buffer_store_dword v%d, v%d, s[4:7], s%d offen sc1' % (V_TR + 2, V_L16, S_PFLG))
                    A('s_mov_b64 exec, -1')
                    A.label('L_nofl' + tag)
            for o in tr_ops(V_WF + 16 * (1 - st) + 4 * nt, nk, nt):
                if not cfg.get('notr'):
                    A(o)
            if ks == 1 and nt >= 1 or (ks == 2 and nt == 0):
                for o in dm.pop(0):
                    if not (cfg.get('nodma') and o.startswith('buffer')):
                        A(o)


def emit_ep_store(A, cfg={}):
    A('s_add_u32 s%d, s%d, 4096' % (S_T0, S_OUT))
    for nt in range(4):
        a = V_ACC + 16 * nt
        t = V_TMP + 8 * nt
        for sp in range(2):
            for hq in range(2):
                q = sp + 2 * hq
                for d in range(2):
                    A('v_cvt_pk_bf16_f32 v%d, v%d, v%d' % (t + 4 * sp + 2 * hq + d, a + 4 * q + 2 * d, a + 4 * q + 2 * d + 1))
            A('buffer_store_dwordx4 %s, v%d, s[4:7], s%d offen offset:%d%s' %
              (R(t + 4 * sp, 4), V_ST, S_OUT if nt < 2 else S_T0, (nt & 1) * 2048 + sp * 512, cfg.get('ostf', ' sc1')))


GELU_K0 = -2.0 * 0.7978845608028654 * 1.4426950408889634
GELU_K1 = GELU_K0 * 0.044715


def emit_ep_gelu(A, cfg={}):
    A('s_mov_b32 s%d, 0x%x' % (S_K0, f2u(GELU_K0)))
    A('s_mov_b32 s%d, 0x%x' % (S_K1, f2u(GELU_K1)))
    A('v_mov_b32 v%d, s%d' % (V_TMP + 40, S_K0))
    for nt in range(2):
        g = V_ACC + 16 * nt
        u = V_ACC + 16 * (nt + 2)
        for r0 in range(0, 16, 4):
            T = [V_TMP + i for i in range(4)]
            for i in range(4):
                A('v_mul_f32 v%d, v%d, v%d' % (T[i], g + r0 + i, g + r0 + i))
            for i in range(4):
                A('v_fma_f32 v%d, v%d, s%d, v%d' % (T[i], T[i], S_K1, V_TMP + 40))
            for i in range(4):
                A('v_mul_f32 v%d, v%d, v%d' % (T[i], T[i], g + r0 + i))
            for i in range(4):
                A('v_exp_f32 v%d, v%d' % (T[i], T[i]))
            for i in range(4):
                A('v_mul_f32 v%d, v%d, v%d' % (g + r0 + i, g + r0 + i, u + r0 + i))
            for i in range(4):
                A('v_add_f32 v%d, 1.0, v%d' % (T[i], T[i]))
            for i in range(4):
                A('v_rcp_f32 v%d, v%d' % (T[i], T[i]))
            A('s_nop 0')
            for i in range(4):
                A('v_mul_f32 v%d, v%d, v%d' % (g + r0 + i, g + r0 + i, T[i]))
        t = V_TMP + 8 + 8 * nt
        for sp in range(2):
            for hq in range(2):
                q = sp + 2 * hq
                for d in range(2):
                    A('v_cvt_pk_bf16_f32 v%d, v%d, v%d' % (t + 4 * sp + 2 * hq + d, g + 4 * q + 2 * d, g + 4 * q + 2 * d + 1))
            A('buffer_store_dwordx4 %s, v%d, s[4:7], s%d offen offset:%d%s' %
              (R(t + 4 * sp, 4), V_L16, S_OUT, nt * 2048 + sp * 1024, cfg.get('ostf', ' sc1')))


def emit_units(A, cfg={}):
    emit_ln(A)
    srd(A, SRD_B, ptr(KA_X), XBYTES)
    A('v_mov_b32 v%d, v%d' % (V_DMA, V_DQ))
    A('s_mov_b32 s%d, 0' % S_U)
    emit_unit_params(A, '_p', cfg)
    for c in range(8):
        for g in dma_ops(c):
            for o in g:
                A(o)
    stamp(A, 5, cfg.get('dbg'))
    emit_ln_compute(A)
    stamp(A, 6, cfg.get('dbg'))
    A('s_mov_b32 s%d, 0x%x' % (S_PFLG, OOB))
    A('s_waitcnt vmcnt(28)')
    A('s_barrier')
    emit_first_frags(A)
    A.label('L_unit')
    A('s_mov_b32 s%d, s%d' % (S_KIND, S_NKIND))
    A('s_mov_b32 s%d, s%d' % (S_OUT, S_NOUT))
    A('s_mov_b32 s%d, s%d' % (S_FLG, S_NFLG))
    A('s_cmp_eq_u32 s%d, 1' % S_KIND)
    A('s_cbranch_scc1 L_unit_n')
    emit_unit(A, 'T', '_t', cfg)
    A('s_cmp_eq_u32 s%d, 2' % S_KIND)
    A('s_cbranch_scc0 L_ep_store')
    emit_ep_gelu(A, cfg)
    A('s_branch L_unit_end')
    A.label('L_unit_n')
    emit_unit(A, 'N', '_n', cfg)
    A.label('L_ep_store')
    emit_ep_store(A, cfg)
    A.label('L_unit_end')
    if cfg.get('dbg'):
        A('s_memrealtime s[98:99]')
        A('s_memtime s[96:97]')
        A('s_lshl_b32 s100, s%d, 8' % S_IDX)
        A('s_lshl_b32 s101, s%d, 2' % S_U)
        A('s_add_u32 s100, s100, s101')
        A('s_add_u32 s100, s100, 0x%x' % (WS_TS + 0x20000))
        A('s_waitcnt lgkmcnt(0)')
        A('v_mov_b32 v15, s98')
        A('s_mov_b64 exec, 1')
        A('buffer_store_dword v15, v%d, s[4:7], s100 offen' % V_L16)
        A('v_mov_b32 v15, s96')
        A('buffer_store_dword v15, v%d, s[4:7], s100 offen offset:128' % V_L16)
        A('s_mov_b64 exec, -1')
    A('s_mov_b32 s%d, s%d' % (S_PFLG, S_FLG))
    A('s_cmp_lg_u32 s%d, 3' % S_NKIND)
    A('s_cbranch_scc1 L_unit')
    A('s_waitcnt vmcnt(0) lgkmcnt(0)')
    A('s_barrier')
    A('s_cmp_lg_u32 s%d, 0' % S_W)
    A('s_cbranch_scc1 L_units_done')
    A('s_mov_b64 exec, 1')
    A('buffer_store_dword v%d, v%d, s[4:7], s%d offen sc1' % (V_TR + 2, V_L16, S_PFLG))
    A('s_mov_b64 exec, -1')
    A.label('L_units_done')


def stamp(A, i, dbg):
    if not dbg:
        return
    A('s_memrealtime s[98:99]')
    A('s_lshl_b32 s100, s%d, 8' % S_IDX)
    A('s_lshl_b32 s101, s%d, 6' % S_W)
    A('s_add_u32 s100, s100, s101')
    A('s_add_u32 s100, s100, 0x%x' % (WS_TS + 0x10000 + 4 * i))
    A('s_waitcnt lgkmcnt(0)')
    A('v_mov_b32 v15, s98')
    A('s_mov_b64 exec, 1')
    A('buffer_store_dword v15, v%d, s[4:7], s100 offen' % V_L16)
    A('s_mov_b64 exec, -1')


def emit_worker(A, cfg):
    dbg = cfg.get('dbg', 0)
    emit_wconsts(A)
    if dbg:
        A('v_mov_b32 v15, s3')
        A('s_lshl_b32 s100, s%d, 8' % S_IDX)
        A('s_lshl_b32 s101, s%d, 6' % S_W)
        A('s_add_u32 s100, s100, s101')
        A('s_add_u32 s100, s100, 0x%x' % (WS_TS + 0x10000))
        A('s_mov_b64 exec, 1')
        A('buffer_store_dword v15, v%d, s[4:7], s100 offen' % V_L16)
        A('s_mov_b64 exec, -1')
    stamp(A, 1, dbg)
    emit_units(A, cfg)
    stamp(A, 2, dbg)
    if cfg.get('stop') == 'units':
        A('s_branch L_end')
        return
    import wrk2
    wrk2.emit_down(A, cfg)
    stamp(A, 3, dbg)
    if cfg.get('stop') == 'down':
        A('s_branch L_end')
        return
    wrk2.emit_x(A, cfg)
    stamp(A, 4, dbg)
```

```python
from wrk import *
import rec

V_D1152, V_P0, V_P1 = 12, 13, 14
LOG2E = 1.4426950408889634
XP_SEG = 144 * 8192


def mf(A, d, a, b, c):
    A('v_mfma_f32_32x32x16_bf16 %s, %s, %s, %s' % (R(d, 16), R(a, 4), R(b, 4), c if isinstance(c, str) else R(c, 16)))


def wave0_flag(A, soff, name):
    A('s_waitcnt vmcnt(0)')
    A('s_barrier')
    A('s_cmp_lg_u32 s%d, 0' % S_W)
    A('s_cbranch_scc1 ' + name)
    A('s_mov_b64 exec, 1')
    A('buffer_store_dword v%d, v%d, s[4:7], s%d offen sc1' % (V_TR + 2, V_L16, soff))
    A('s_mov_b64 exec, -1')
    A.label(name)


def emit_down(A, cfg):
    S_SLOT, S_DSL, S_WOF, S_HOF, S_C = 60, 61, 62, 64, 65
    HB = 112
    ACC = 48
    VA0, VA1 = 80, 81
    A('s_cmp_ge_u32 s%d, 9' % S_CG)
    A('s_cbranch_scc1 L_down_done')
    srd(A, SRD_A, ptr(KA_WD), FBYTES)
    A('s_mul_i32 s%d, s%d, %d' % (S_WOF, S_W, 32 * 1152))
    A('s_lshl_b32 s%d, s%d, 7' % (S_T0, S_CG))
    A('s_add_u32 s%d, s%d, s%d' % (S_WOF, S_WOF, S_T0))
    A('s_lshl_b32 s%d, s%d, 12' % (S_DSL, S_W))

    def dma_groups():
        gs = []
        for i in range(4):
            g = ['s_add_u32 m0, s%d, %d' % (S_DSL, i * 1024),
                 's_add_u32 s%d, s%d, %d' % (S_T3, S_WOF, i * 8 * 1152),
                 'buffer_load_dwordx4 v%d, s[8:11], s%d offen lds' % (V_D1152, S_T3)]
            gs.append(g)
        gs[3] += ['s_add_u32 s%d, s%d, %d' % (S_WOF, S_WOF, 128 * 1152),
                  's_add_u32 s%d, s%d, 16384' % (S_DSL, S_DSL),
                  's_and_b32 s%d, s%d, 0x1ffff' % (S_DSL, S_DSL)]
        return gs

    def h_ops(buf):
        o = ['s_add_u32 s%d, s%d, 4096' % (S_T2, S_HOF)]
        for ks in range(8):
            o.append('buffer_load_dwordx4 %s, v%d, s[4:7], s%d offen offset:%d sc1' %
                     (R(HB + 32 * buf + 4 * ks, 4), V_L16, S_HOF if ks < 4 else S_T2, (ks & 3) * 1024))
        o.append('s_add_u32 s%d, s%d, 8192' % (S_HOF, S_HOF))
        return o
    for c in range(6):
        for g in dma_groups():
            for o in g:
                A(o)
    A('s_lshl_b32 s%d, s%d, 10' % (S_T0, S_RB))
    A('s_add_u32 s%d, s%d, 0x%x' % (S_T0, S_T0, FL_U + 96 * 4))
    A('v_lshrrev_b32 v82, 2, v%d' % V_L16)
    poll_flags(A, 'L_dn_p0', 82, 's%d' % S_T0, 64)
    A('s_add_u32 s%d, s%d, 256' % (S_T0, S_T0))
    poll_flags(A, 'L_dn_p1', 82, 's%d' % S_T0, 8)
    A('s_lshl_b32 s%d, s%d, 2' % (S_T0, S_RB))
    A('s_add_u32 s%d, s%d, s%d' % (S_T0, S_T0, S_W))
    A('s_mul_i32 s%d, s%d, %d' % (S_HOF, S_T0, 144 * 2048))
    A('s_add_u32 s%d, s%d, 0x%x' % (S_HOF, S_HOF, WS_H))
    for b in range(3):
        for o in h_ops(b):
            A(o)
    for i in range(32):
        A('v_mov_b32 v%d, 0' % (ACC + i))
    A('s_mov_b32 s%d, 0' % S_SLOT)
    A('s_mov_b32 s%d, 9' % S_C)
    A('v_mov_b32 v%d, v%d' % (VA0, V_P0))
    A('v_mov_b32 v%d, v%d' % (VA1, V_P1))
    A('s_waitcnt vmcnt(8)')
    A('s_barrier')

    def tr(dst, ks, nt):
        ft, sp = ks >> 1, ks & 1
        return ['ds_read_b64_tr_b16 %s, v%d offset:%d' % (R(dst + 2 * t, 2), (VA0, VA1)[nt], (32 * ft + 8 * sp + 16 * t) * 128)
                for t in range(2)]
    for nt in range(2):
        for o in tr(V_WF + 4 * nt, 0, nt):
            A(o)
    A.label('L_dn_loop')
    for u in range(4):
        fill = []
        for ks in range(8):
            st = ks & 1
            for nt in range(2):
                A('s_waitcnt lgkmcnt(2)')
                mf(A, ACC + 16 * nt, V_WF + 8 * st + 4 * nt, HB + 32 * u + 4 * ks, ACC + 16 * nt)
                if ks == 1 and nt == 0:
                    A('s_waitcnt vmcnt(12)')
                    A('s_barrier')
                    fill = [o for g in dma_groups() for o in g] + h_ops((u + 3) % 4)
                if ks == 7 and nt == 0:
                    A('s_add_u32 s%d, s%d, 16384' % (S_SLOT, S_SLOT))
                    A('s_and_b32 s%d, s%d, 0x1ffff' % (S_SLOT, S_SLOT))
                    A('v_add_u32 v%d, s%d, v%d' % (VA0, S_SLOT, V_P0))
                    A('v_add_u32 v%d, s%d, v%d' % (VA1, S_SLOT, V_P1))
                for o in tr(V_WF + 8 * (1 - st) + 4 * nt, (ks + 1) % 8, nt):
                    A(o)
                k = 0
                while fill and k < 3:
                    o = fill.pop(0)
                    A(o)
                    k += 2 if o.startswith('buffer') else 1
        assert not fill
    A('s_sub_u32 s%d, s%d, 1' % (S_C, S_C))
    A('s_cmp_lg_u32 s%d, 0' % S_C)
    A('s_cbranch_scc1 L_dn_loop')
    A('s_mov_b32 s%d, 0x%x' % (S_K0, f2u(-LOG2E)))
    A('v_and_b32 v82, 31, v%d' % V_LANE)
    A('v_mul_u32_u24 v82, 2304, v82')
    A('v_lshrrev_b32 v83, 5, v%d' % V_LANE)
    A('v_lshl_add_u32 v82, v83, 4, v82')
    A('s_lshl_b32 s%d, s%d, 2' % (S_T0, S_RB))
    A('s_add_u32 s%d, s%d, s%d' % (S_T0, S_T0, S_W))
    A('s_mul_i32 s%d, s%d, %d' % (S_T0, S_T0, 32 * 2304))
    A('s_lshl_b32 s%d, s%d, 8' % (S_T1, S_CG))
    A('s_add_u32 s%d, s%d, s%d' % (S_T0, S_T0, S_T1))
    A('s_add_u32 s%d, s%d, 0x%x' % (S_T0, S_T0, WS_G))
    A('s_waitcnt vmcnt(0) lgkmcnt(0)')
    for r0 in range(0, 32, 4):
        T = [84 + i for i in range(4)]
        for i in range(4):
            A('v_mul_f32 v%d, s%d, v%d' % (T[i], S_K0, ACC + r0 + i))
        for i in range(4):
            A('v_exp_f32 v%d, v%d' % (T[i], T[i]))
        A('s_nop 0')
        for i in range(4):
            A('v_add_f32 v%d, 1.0, v%d' % (T[i], T[i]))
        for i in range(4):
            A('v_rcp_f32 v%d, v%d' % (T[i], T[i]))
        A('s_nop 0')
        for i in range(4):
            A('v_mul_f32 v%d, v%d, v%d' % (ACC + r0 + i, ACC + r0 + i, T[i]))
        A('buffer_store_dwordx4 %s, v82, s[4:7], s%d offen offset:%d sc1' %
          (R(ACC + r0, 4), S_T0, (r0 >> 4) * 128 + ((r0 >> 2) & 3) * 32))
    A('s_lshl_b32 s%d, s%d, 6' % (S_T0, S_RB))
    A('s_lshl_b32 s%d, s%d, 2' % (S_T1, S_CG))
    A('s_add_u32 s%d, s%d, s%d' % (S_T0, S_T0, S_T1))
    A('s_add_u32 s%d, s%d, 0x%x' % (S_T0, S_T0, FL_G))
    wave0_flag(A, S_T0, 'L_down_done')


def emit_x(A, cfg):
    S_H, S_SEG, S_Q, S_K, S_KMO, S_XW, S_GR = 60, 61, 62, 64, 65, 66, 67
    S_CT = 68
    SRD_X, SRD_O = 76, 80
    BIAS, QF, KF, VF, KM, VM = 16, 32, 64, 96, 128, 160
    SX, SM, OA = 176, 192, 208
    V_KM, V_VM, V_XP, V_XO, V_FL, V_GR = 4, 5, 6, 8, 9, 10
    V_XP = 7
    l = V_LANE
    A('s_and_b32 s%d, s%d, 31' % (S_H, S_IDX))
    A('s_lshr_b32 s%d, s%d, 5' % (S_SEG, S_IDX))
    A('s_waitcnt vmcnt(0) lgkmcnt(0)')
    A('s_barrier')
    srd(A, SRD_A, ptr(KA_WO), WBYTES)
    srd(A, SRD_X, ptr(KA_X), XBYTES)
    srd(A, SRD_O, ptr(KA_OUT), XBYTES)
    A('s_mul_i32 s%d, s%d, 147456' % (S_T0, S_H))
    A('s_mul_i32 s%d, s%d, %d' % (S_T1, S_W, 32 * 1152))
    A('s_add_u32 s%d, s%d, s%d' % (S_T0, S_T0, S_T1))
    A('s_lshl_b32 s%d, s%d, 12' % (S_T1, S_W))
    for c in range(9):
        for i in range(4):
            A('s_add_u32 m0, s%d, %d' % (S_T1, c * 16384 + i * 1024))
            A('s_add_u32 s%d, s%d, %d' % (S_T3, S_T0, c * 128 + i * 8 * 1152))
            A('buffer_load_dwordx4 v%d, s[8:11], s%d offen lds' % (V_D1152, S_T3))
    A('v_and_b32 v20, 31, v%d' % l)
    A('v_lshrrev_b32 v21, 5, v%d' % l)
    A('v_lshlrev_b32 v22, 4, v20')
    A('v_lshl_add_u32 v22, v21, 7, v22')
    A('v_mov_b32 v23, 0x%x' % OOB)
    A('v_cmp_gt_u32 vcc, 8, v20')
    A('v_cndmask_b32 v%d, v23, v22, vcc' % V_KM)
    A('v_and_b32 v22, 15, v20')
    A('v_lshl_add_u32 v22, v21, 4, v22')
    A('v_lshlrev_b32 v22, 4, v22')
    A('v_lshrrev_b32 v23, 4, v20')
    A('v_lshl_add_u32 v%d, v23, 3, v22' % V_VM)
    A('v_lshl_add_u32 v22, v21, 1, v23')
    A('v_lshlrev_b32 v22, 13, v22')
    A('v_and_b32 v23, 15, v20')
    A('v_lshl_add_u32 v%d, v23, 4, v22' % V_XP)
    A('v_and_b32 v22, 15, v%d' % l)
    A('v_lshrrev_b32 v23, 4, v%d' % l)
    A('v_mul_u32_u24 v24, 1152, v22')
    A('v_lshl_add_u32 v24, v23, 3, v24')
    A('v_lshlrev_b32 v25, 1, v24')
    A('v_mov_b32 v26, 0x%x' % OOB)
    A('v_cmp_gt_u32 vcc, 32, v%d' % l)
    A('v_cndmask_b32 v%d, v26, v24, vcc' % V_XO)
    A('v_cndmask_b32 v%d, v26, v25, vcc' % V_GR)
    A('v_lshlrev_b32 v%d, 2, v%d' % (V_FL, l))
    A('v_lshlrev_b32 v11, 7, v%d' % l)
    A('v_and_b32 v24, 1, v22')
    A('v_lshlrev_b32 v24, 4, v24')
    A('v_mov_b32 v25, 0x3f80')
    A('v_lshlrev_b32 v24, v24, v25')
    A('v_lshrrev_b32 v25, 1, v22')
    for d in range(4):
        A('v_cmp_eq_u32 vcc, %d, v25' % d)
        A('v_cndmask_b32 v26, 0, v24, vcc')
        A('v_accvgpr_write_b32 a%d, v26' % d)
    A('v_lshlrev_b32 v240, 2, v21')
    A('v_sub_u32 v240, v20, v240')
    A('v_mov_b32 v241, 0xff800000')
    for r in range(16):
        A('v_cmp_gt_i32 vcc, %d, v240' % (8 * (r >> 2) + (r & 3)))
        A('v_cndmask_b32 v%d, 0, v241, vcc' % (BIAS + r))
    A('s_mov_b32 s%d, 0x%x' % (S_K0, f2u(SCALE_LOG2E)))
    A('s_waitcnt vmcnt(0)')
    A('s_barrier')

    A.label('L_x_task')
    A('s_lshr_b32 s%d, s%d, 2' % (S_T0, S_SEG))
    A('s_lshl_b32 s%d, s%d, 10' % (S_T0, S_T0))
    A('s_lshl_b32 s%d, s%d, 2' % (S_T1, S_H))
    A('s_add_u32 s%d, s%d, s%d' % (S_T0, S_T0, S_T1))
    A('s_add_u32 s%d, s%d, 0x%x' % (S_T0, S_T0, FL_U))
    poll_flags(A, 'L_x_pu', 11, 's%d' % S_T0, 3, vt=SX)
    A('s_lshl_b32 s%d, s%d, 19' % (S_Q, S_H))
    A('s_lshl_b32 s%d, s%d, 13' % (S_T0, S_SEG))
    A('s_add_u32 s%d, s%d, s%d' % (S_Q, S_Q, S_T0))
    A('s_lshl_b32 s%d, s%d, 1' % (S_K, S_Q))
    A('s_add_u32 s%d, s%d, 0x%x' % (S_Q, S_Q, WS_Q))
    A('s_add_u32 s%d, s%d, 0x%x' % (S_K, S_K, WS_KV))
    for (dst, so, add) in ((QF, S_Q, 0), (KF, S_K, 0), (VF, S_K, 8192)):
        for half in range(2):
            A('s_add_u32 s%d, s%d, %d' % (S_T0, so, add + half * 4096))
            for i in range(4):
                A('buffer_load_dwordx4 %s, v%d, s[4:7], s%d offen offset:%d sc1' %
                  (R(dst + 16 * half + 4 * i, 4), V_ST, S_T0, (i >> 1) * 2048 + (i & 1) * 512))
    A('s_mul_i32 s%d, s%d, %d' % (S_KMO, S_H, rec.KM_HEAD))
    A('s_mul_i32 s%d, s%d, %d' % (S_T0, S_SEG, rec.KM_STEP))
    A('s_add_u32 s%d, s%d, s%d' % (S_KMO, S_KMO, S_T0))
    A('s_add_u32 s%d, s%d, 0x%x' % (S_KMO, S_KMO, WS_KMVM + rec.KM_STEP))
    for i in range(8):
        A('s_waitcnt vmcnt(%d)' % (15 - i))
        mf(A, SX, KF + 4 * i, QF + 4 * i, BIAS if i == 0 else SX)
    A('s_lshl_b32 s%d, s%d, 7' % (S_T0, S_SEG))
    A('s_lshl_b32 s%d, s%d, 2' % (S_T1, S_H))
    A('s_add_u32 s%d, s%d, s%d' % (S_T0, S_T0, S_T1))
    A('s_add_u32 s%d, s%d, 0x%x' % (S_T0, S_T0, FL_KM))
    poll_flags(A, 'L_x_pk', V_FL, 's%d' % S_T0, 1, vt=SM)
    for i in range(8):
        A('buffer_load_dwordx4 %s, v%d, s[4:7], s%d offen offset:%d sc1' %
          (R(KM + 4 * i, 4), V_KM, S_KMO, (i >> 1) * 512 + (i & 1) * 256))
    A('s_add_u32 s%d, s%d, 2048' % (S_T0, S_KMO))
    for nt in range(4):
        for hf in range(2):
            A('buffer_load_dwordx2 %s, v%d, s[4:7], s%d offen offset:%d sc1' %
              (R(VM + 4 * nt + 2 * hf, 2), V_VM, S_T0, nt * 1024 + hf * 512))
    T = 240
    A('v_max3_f32 v%d, v%d, v%d, v%d' % (T, SX, SX + 1, SX + 2))
    for r in range(3, 15, 2):
        A('v_max3_f32 v%d, v%d, v%d, v%d' % (T, T, SX + r, SX + r + 1))
    A('v_max_f32 v%d, v%d, v%d' % (T, T, SX + 15))
    for i in range(8):
        A('s_waitcnt vmcnt(%d)' % (15 - i))
        mf(A, SM, KM + 4 * i, QF + 4 * i, '0' if i == 0 else SM)
    A('v_max3_f32 v%d, v%d, v%d, v%d' % (T, T, SM, SM + 1))
    A('v_max3_f32 v%d, v%d, v%d, v%d' % (T, T, SM + 2, SM + 3))
    A('v_mov_b32 v%d, v%d' % (T + 1, T))
    A('v_permlane32_swap_b32 v%d, v%d' % (T, T + 1))
    A('v_max_f32 v%d, v%d, v%d' % (T, T, T + 1))
    A('v_mul_f32 v%d, s%d, v%d' % (T, S_K0, T))
    P = [SX + r for r in range(16)] + [SM + r for r in range(4)]
    for r in P:
        A('v_fma_f32 v%d, v%d, s%d, -v%d' % (r, r, S_K0, T))
    for r in P:
        A('v_exp_f32 v%d, v%d' % (r, r))
    A('v_add_f32 v%d, v%d, v%d' % (T + 2, P[0], P[1]))
    A('v_add_f32 v%d, v%d, v%d' % (T + 3, P[2], P[3]))
    for k in range(4, 20, 2):
        A('v_add_f32 v%d, v%d, v%d' % (T + 2, T + 2, P[k]))
        A('v_add_f32 v%d, v%d, v%d' % (T + 3, T + 3, P[k + 1]))
    A('v_add_f32 v%d, v%d, v%d' % (T + 2, T + 2, T + 3))
    A('v_mov_b32 v%d, v%d' % (T + 3, T + 2))
    A('v_permlane32_swap_b32 v%d, v%d' % (T + 2, T + 3))
    A('v_add_f32 v%d, v%d, v%d' % (T + 2, T + 2, T + 3))
    A('v_rcp_f32 v%d, v%d' % (T + 2, T + 2))
    A('s_nop 0')
    for r in P:
        A('v_mul_f32 v%d, v%d, v%d' % (r, r, T + 2))
    PA, PB, PM = 244, 248, 252
    for sp, dst in ((0, PA), (1, PB)):
        for hq in range(2):
            q = sp + 2 * hq
            for d in range(2):
                A('v_cvt_pk_bf16_f32 v%d, v%d, v%d' % (dst + 2 * hq + d, SX + 4 * q + 2 * d, SX + 4 * q + 2 * d + 1))
    for k in range(4):
        A('v_cvt_pk_bf16_f32 v%d, v%d, v%d' % (PM + k, SM + 2 * (k & 1), SM + 2 * (k & 1) + 1))
    OT = QF
    A('s_waitcnt vmcnt(0)')
    for nt in range(4):
        mf(A, OT + 16 * nt, VF + 8 * nt, PA, '0')
    for nt in range(4):
        mf(A, OT + 16 * nt, VF + 8 * nt + 4, PB, OT + 16 * nt)
    for nt in range(4):
        mf(A, OT + 16 * nt, VM + 4 * nt, PM, OT + 16 * nt)
    OB = KM
    A('s_mov_b32 s%d, s%d' % (S_CT, S_W))
    A('s_mul_i32 s%d, s%d, %d' % (S_XW, S_SEG, XP_SEG))
    A('s_lshl_b32 s%d, s%d, 8' % (S_T0, S_H))
    A('s_add_u32 s%d, s%d, s%d' % (S_XW, S_XW, S_T0))
    A('s_add_u32 s%d, s%d, 0x%x' % (S_XW, S_XW, WS_XP))
    for nt in range(4):
        for sp in range(2):
            for hq in range(2):
                q = sp + 2 * hq
                for d in range(2):
                    A('v_cvt_pk_bf16_f32 v%d, v%d, v%d' % (OB + 8 * nt + 4 * sp + 2 * hq + d,
                                                           OT + 16 * nt + 4 * q + 2 * d, OT + 16 * nt + 4 * q + 2 * d + 1))
    WFR, CA = 96, 176
    A.label('L_x_ct')
    A('s_lshr_b32 s%d, s%d, 1' % (S_T0, S_CT))
    A('s_lshl_b32 s%d, s%d, 14' % (S_T0, S_T0))
    A('s_and_b32 s%d, s%d, 1' % (S_T1, S_CT))
    A('s_lshl_b32 s%d, s%d, 6' % (S_T1, S_T1))
    A('v_xor_b32 v242, s%d, v%d' % (S_T1, V_P0))
    A('v_add_u32 v242, s%d, v242' % S_T0)
    for ks in range(8):
        for t in range(2):
            A('ds_read_b64_tr_b16 %s, v242 offset:%d' % (R(WFR + 4 * ks + 2 * t, 2), (32 * (ks >> 1) + 8 * (ks & 1) + 16 * t) * 128))
    A('s_lshl_b32 s%d, s%d, 16' % (S_T0, S_CT))
    A('s_add_u32 s%d, s%d, s%d' % (S_T0, S_T0, S_XW))
    A('s_add_u32 s%d, s%d, 32768' % (S_T1, S_T0))
    for ks in range(8):
        A('s_waitcnt lgkmcnt(%d)' % (14 - 2 * ks))
        mf(A, CA, WFR + 4 * ks, OB + 4 * ks, '0' if ks == 0 else CA)
    A('s_add_u32 s%d, s%d, 4' % (S_CT, S_CT))
    for k in range(8):
        A('v_cvt_pk_bf16_f32 v%d, v%d, v%d' % (192 + k, CA + 2 * k, CA + 2 * k + 1))
    for b in (192, 196):
        A('v_permlane32_swap_b32 v%d, v%d' % (b, b + 2))
        A('v_permlane32_swap_b32 v%d, v%d' % (b + 1, b + 3))
    A('buffer_store_dwordx4 v[192:195], v%d, s[4:7], s%d offen sc1' % (V_XP, S_T0))
    A('buffer_store_dwordx4 v[196:199], v%d, s[4:7], s%d offen sc1' % (V_XP, S_T1))
    A('s_cmp_lt_u32 s%d, 18' % S_CT)
    A('s_cbranch_scc1 L_x_ct')
    A('s_lshl_b32 s%d, s%d, 7' % (S_T2, S_SEG))
    A('s_add_u32 s%d, s%d, 0x%x' % (S_T2, S_T2, FL_X))
    A('s_lshl_b32 s%d, s%d, 2' % (S_T0, S_H))
    A('s_add_u32 s%d, s%d, s%d' % (S_T0, S_T0, S_T2))
    wave0_flag(A, S_T0, 'L_x_fl')
    A('s_lshr_b32 s%d, s%d, 2' % (S_T0, S_SEG))
    A('s_lshl_b32 s%d, s%d, 6' % (S_T0, S_T0))
    A('s_add_u32 s%d, s%d, 0x%x' % (S_T0, S_T0, FL_G))
    poll_flags(A, 'L_x_pg', V_FL, 's%d' % S_T0, 9, vt=SX)
    A('s_lshl_b32 s%d, s%d, 2' % (S_GR, S_H))
    A('s_add_u32 s%d, s%d, s%d' % (S_GR, S_GR, S_W))
    first = True
    A.label('L_x_gr')
    A('s_and_b32 s%d, s%d, 1' % (S_T0, S_GR))
    A('s_lshl_b32 s%d, s%d, 4' % (S_T0, S_T0))
    A('s_lshl_b32 s%d, s%d, 5' % (S_T1, S_SEG))
    A('s_add_u32 s%d, s%d, s%d' % (S_T0, S_T0, S_T1))
    A('s_mul_i32 s%d, s%d, 1152' % (S_T0, S_T0))
    A('s_lshr_b32 s%d, s%d, 1' % (S_T1, S_GR))
    A('s_lshl_b32 s%d, s%d, 4' % (S_T1, S_T1))
    A('s_add_u32 s%d, s%d, s%d' % (S_Q, S_T0, S_T1))
    A('s_lshl_b32 s%d, s%d, 1' % (S_K, S_Q))
    A('s_add_u32 s%d, s%d, 0x%x' % (S_K, S_K, WS_G))
    A('buffer_load_dwordx2 v[200:201], v%d, s[%d:%d], s%d offen' % (V_XO, SRD_X, SRD_X + 3, S_Q))
    A('buffer_load_dwordx4 v[204:207], v%d, s[4:7], s%d offen sc1' % (V_GR, S_K))
    poll_flags(A, 'L_x_px', V_FL, 's%d' % S_T2, 32, vt=SX)
    A('s_mul_i32 s%d, s%d, %d' % (S_T0, S_SEG, XP_SEG))
    A('s_lshl_b32 s%d, s%d, 13' % (S_T1, S_GR))
    A('s_add_u32 s%d, s%d, s%d' % (S_T0, S_T0, S_T1))
    A('s_add_u32 s%d, s%d, 0x%x' % (S_T0, S_T0, WS_XP))
    A('s_add_u32 s%d, s%d, 4096' % (S_T1, S_T0))
    for i in range(8):
        A('buffer_load_dwordx4 %s, v%d, s[4:7], s%d offen offset:%d sc1' %
          (R(32 + 4 * i, 4), V_L16, S_T0 if i < 4 else S_T1, (i & 3) * 1024))
    A('v_lshlrev_b32 v208, 16, v200')
    A('v_and_b32 v209, 0xffff0000, v200')
    A('v_lshlrev_b32 v210, 16, v201')
    A('v_and_b32 v211, 0xffff0000, v201')
    for i in range(8):
        A('s_waitcnt vmcnt(%d)' % (7 - i))
        A('v_mfma_f32_16x16x32_bf16 v[212:215], a[0:3], %s, %s' % (R(32 + 4 * i, 4), '0' if i == 0 else 'v[212:215]'))
    for i in range(4):
        A('v_fmac_f32 v%d, v%d, v%d' % (208 + i, 212 + i, 204 + i))
    A('v_cvt_pk_bf16_f32 v208, v208, v209')
    A('v_cvt_pk_bf16_f32 v209, v210, v211')
    A('buffer_store_dwordx2 v[208:209], v%d, s[%d:%d], s%d offen' % (V_XO, SRD_O, SRD_O + 3, S_Q))
    A('s_add_u32 s%d, s%d, 128' % (S_GR, S_GR))
    A('s_cmp_lt_u32 s%d, 144' % S_GR)
    A('s_cbranch_scc1 L_x_gr')
    A('s_add_u32 s%d, s%d, 7' % (S_SEG, S_SEG))
    A('s_cmp_lt_u32 s%d, 64' % S_SEG)
    A('s_cbranch_scc1 L_x_task')
```

```python
import sys, json
import rec, wrk
from prologue import *

NAME = 'recurrent_scan__memory_aug_recurrent_mem_tr__geglu_ffn__prompt_kernel'


def build(cfg):
    dbg = cfg.get('dbg', 0)
    A = Asm()
    if dbg:
        A('s_memrealtime s[100:101]')
        A('s_waitcnt lgkmcnt(0)')
        A('s_mov_b32 s3, s100')
    emit_prologue(A)
    A('s_cmp_eq_u32 s%d, 0' % S_ROLE)
    A('s_cbranch_scc1 L_worker')
    if cfg.get('norec'):
        A('s_branch L_end')
    else:
        rec.emit_rec(A, dbg, rec.kv_wait if not cfg.get('nokvwait') else None, cfg)
    A.label('L_worker')
    wrk.emit_worker(A, cfg)
    A.label('L_end')
    A('s_endpgm')
    body, n = finish(A.lines)
    t, d = kernel_text(NAME, body)
    hdr = open('recurrent_scan__memory_aug_recurrent_mem_tr__geglu_ffn__prompt.s.ref').read()
    hdr = hdr[:hdr.index('; @launch')]
    hdr += '; @launch grid=(256,1,1) block=(256,1,1) lds=163840\n'
    hdr += '.amdgcn_target "amdgcn-amd-amdhsa--gfx950"\n'
    return hdr + t + d, n


if __name__ == '__main__':
    cfg = json.loads(sys.argv[2]) if len(sys.argv) > 2 else {}
    txt, n = build(cfg)
    cfg['nts'] = rec.NTS[0]
    txt, n = build(cfg)
    open(sys.argv[1], 'w').write(txt)
    print('nops', n, 'lines', txt.count('\n'), 'bytes', len(txt))
```
